```python
import torch

def _softmax(x, axis=-1):
    return torch.softmax(x, dim=axis)
def _gelu(x):
    return torch.nn.functional.gelu(x, approximate="tanh")
def _silu(x):
    return torch.nn.functional.silu(x)
def _sigmoid(x):
    return torch.sigmoid(x)
def _layernorm(x, axis=-1, eps=1e-5):
    m = x.mean(dim=axis, keepdim=True)
    v = x.var(dim=axis, keepdim=True, unbiased=False)
    return (x - m) / torch.sqrt(v + eps)
def _scatter_add(tgt, idx, src, axis=0):
    return tgt.clone().index_add_(axis, idx, src)
def _segment_sum(src, seg, n):
    out = torch.zeros((n,) + src.shape[1:], dtype=src.dtype)
    return out.index_add_(0, seg, src)
def _pad(x, pw):
    flat = tuple(v for pair in reversed(pw) for v in pair)
    return torch.nn.functional.pad(x, flat)

kernel_name = 'standalone__dense_activation_gelu__prompt'

def setup_inputs():

    _w = (lambda a: (lambda t: t.to(torch.bfloat16) if t.is_floating_point() else t)(torch.as_tensor(a)))
    B, S, D, F = 1, 2048, 448, 1792
    return {
        "x": _w((lambda *s: torch.randn(*s, dtype=torch.bfloat16) * 0.05)(B, S, D)),
        "w1": _w((lambda *s: torch.randn(*s, dtype=torch.bfloat16) * 3.2)(D, F) * (D ** -0.5)),
        "b1": _w((lambda *s: torch.randn(*s, dtype=torch.bfloat16) * 3.2)(F) * 0.01),
        "w2": _w((lambda *s: torch.randn(*s, dtype=torch.bfloat16) * 0.05)(F, D) * (F ** -0.5)),
        "b2": _w((lambda *s: torch.randn(*s, dtype=torch.bfloat16) * 0.1)(D) * 0.01),
    }

def reference(x, w1, b1, w2, b2):
    h = torch.einsum("bsd,df->bsf", x, w1) + b1
    h = _gelu(h)
    return torch.einsum("bsf,fd->bsd", h, w2) + b2
```

```python
import sys
STAMPS = int(sys.argv[2]) if len(sys.argv) > 2 else 0
OUT = sys.argv[1] if len(sys.argv) > 1 else "standalone__dense_activation_gelu__prompt.s"
NAME = "standalone__dense_activation_gelu__prompt_kernel"
NWG = 224
FLAGS_OFF = 0x800000
L = []
def e(s): L.append("  " + s)
def lab(s): L.append(s + ":")
def cmt(s): L.append("  ; " + s)

class Ctr:
    def __init__(self, name, maxv): self.q = []; self.name = name; self.maxv = maxv
    def issue(self, tag): self.q.append(tag)
    def need(self, tags):
        if isinstance(tags, str): tags = [tags]
        last = -1
        for i, t in enumerate(self.q):
            if t in tags: last = i
        if last < 0: return None
        n = len(self.q) - 1 - last
        self.q = self.q[last+1:]
        return min(n, self.maxv)
    def drain(self): self.q = []
VM = Ctr("vmcnt", 63); LG = Ctr("lgkmcnt", 15)
def wait(vm=None, lg=None):
    parts = []
    if vm is not None:
        n = VM.need(vm)
        if n is not None: parts.append(f"vmcnt({n})")
    if lg is not None:
        n = LG.need(lg)
        if n is not None: parts.append(f"lgkmcnt({n})")
    if parts: e("s_waitcnt " + " ".join(parts))
def wait_all_lg():
    LG.drain(); e("s_waitcnt lgkmcnt(0)")

nstamp = [0]
def stamp():
    if STAMPS:
        i = nstamp[0]; nstamp[0] += 1
        assert i < 14
        e(f"s_memtime s[{72+2*i}:{73+2*i}]")
SX, SW1, SW2, SWS, SOUT, SB1, SB2, SDBG = 20, 24, 28, 32, 36, 40, 44, 48
sWave, sXcd, sMtl, sFtl, sMt, sFt, sRot, sM2c = 52, 53, 54, 55, 56, 57, 58, 59
sT0, sT1, sT2, sT3 = 60, 61, 62, 63
sXbase, sWbase, sM0x, sM0w, sC = 64, 65, 66, 67, 68
sHoff, sW2base, sStage = 69, 70, 71
vLane = 1
vXo = [2, 3, 4, 5]; vWo = [6, 7, 8, 9]
vAB = [10, 11, 12, 13]; vAB2 = [14, 15, 16, 17]
vAA = [18, 19]; vAA2 = [20, 21]
vW2o = 22; vAW2 = [23, 24]
vH0, vH1 = 25, 26
vFlagP, vFlagC, vNonP, vNonC = 27, 28, 29, 30
vT = list(range(32, 64))
ACC = 64; BIAS = 128; FRAG = 160; RAW = 224
def acc(ti, mi): return ACC + 16 * (2 * ti + mi)
def vr(a, n): return f"v[{a}:{a+n-1}]"
def ar(a, n): return f"a[{a}:{a+n-1}]"
def sr(a, n): return f"s[{a}:{a+n-1}]"

hdr = open("standalone__dense_activation_gelu__prompt.s.ref").read().split("; Override")[0]
top = hdr + f"; Fused MLP: phase 1 h=gelu(x@w1+b1) tiles -> d_ws (write-through), flags, phase 2 out=h@w2+b2.\n; @launch grid=({NWG},1,1) block=(256,1,1) lds=163840\n"
top += f'.amdgcn_target "amdgcn-amd-amdhsa--gfx950"\n.text\n.globl {NAME}\n.p2align 8\n.type {NAME},@function\n{NAME}:\n'

if STAMPS:
    e("s_memrealtime s[100:101]")
    e("s_memtime s[98:99]")
e(f"s_cmp_ge_u32 s2, {NWG}")
e("s_cbranch_scc1 L_end")
e("s_load_dwordx16 s[4:19], s[0:1], 0")
e(f"v_and_b32 v{vLane}, 63, v0")
e(f"v_lshrrev_b32 v{vT[0]}, 6, v0")
e(f"s_and_b32 s{sXcd}, s2, 7")
e(f"v_readfirstlane_b32 s{sWave}, v{vT[0]}")
e(f"s_lshr_b32 s{sT0}, s2, 3")
e(f"s_mul_i32 s{sMtl}, s{sT0}, 37")
e(f"s_lshr_b32 s{sMtl}, s{sMtl}, 8")
e(f"s_mul_i32 s{sT1}, s{sMtl}, 7")
e(f"s_sub_u32 s{sFtl}, s{sT0}, s{sT1}")
e(f"s_lshr_b32 s{sMt}, s{sXcd}, 1")
e(f"s_lshl_b32 s{sMt}, s{sMt}, 2")
e(f"s_add_u32 s{sMt}, s{sMt}, s{sMtl}")
e(f"s_and_b32 s{sFt}, s{sXcd}, 1")
e(f"s_mul_i32 s{sFt}, s{sFt}, 7")
e(f"s_add_u32 s{sFt}, s{sFt}, s{sFtl}")
e(f"s_lshl_b32 s{sM2c}, s{sXcd}, 2")
e(f"s_add_u32 s{sM2c}, s{sM2c}, s{sMtl}")
e(f"s_lshl_b32 s{sRot}, s{sMtl}, 1")
e(f"s_add_u32 s{sRot}, s{sRot}, s{sFtl}")
e(f"s_add_u32 s{sRot}, s{sRot}, s{sXcd}")
e(f"s_mul_i32 s{sT0}, s{sRot}, 37")
e(f"s_lshr_b32 s{sT0}, s{sT0}, 8")
e(f"s_mul_i32 s{sT0}, s{sT0}, 7")
e(f"s_sub_u32 s{sRot}, s{sRot}, s{sT0}")
t0, t1, t2, t3, t4, t5 = vT[0:6]
e(f"v_lshrrev_b32 v{t0}, 3, v{vLane}")
e(f"v_and_b32 v{t1}, 7, v{vLane}")
e(f"v_lshrrev_b32 v{t2}, 1, v{t0}")
e(f"v_xor_b32 v{t3}, v{t1}, v{t2}")
e(f"v_xor_b32 v{t4}, 4, v{t3}")
e(f"v_mul_u32_u24 v{t5}, 896, v{t0}")
e(f"v_lshl_add_u32 v{vXo[0]}, v{t3}, 4, v{t5}")
e(f"v_lshl_add_u32 v{vXo[1]}, v{t4}, 4, v{t5}")
e(f"v_add_u32 v{vXo[1]}, {8*896}, v{vXo[1]}")
e(f"v_add_u32 v{vXo[2]}, {16*896}, v{vXo[0]}")
e(f"v_add_u32 v{vXo[3]}, {16*896}, v{vXo[1]}")
e(f"v_and_b32 v{t2}, 1, v{t2}")
e(f"v_lshlrev_b32 v{t2}, 2, v{t2}")
e(f"v_xor_b32 v{t2}, v{t1}, v{t2}")
e(f"v_lshl_add_u32 v{vW2o}, v{t2}, 4, v{t5}")
e(f"v_lshrrev_b32 v{t0}, 4, v{vLane}")
e(f"v_bfe_u32 v{t1}, v{vLane}, 2, 2")
e(f"v_xor_b32 v{t1}, v{t1}, v{t0}")
e(f"v_and_b32 v{t2}, 3, v{vLane}")
e(f"v_mul_u32_u24 v{t5}, 3584, v{t0}")
e(f"v_lshl_add_u32 v{t5}, v{t1}, 6, v{t5}")
e(f"v_lshl_add_u32 v{vWo[0]}, v{t2}, 4, v{t5}")
for q in range(1, 4):
    e(f"v_add_u32 v{vWo[q]}, {q*4*3584}, v{vWo[0]}")
e(f"s_lshl_b32 s{sT0}, s{sMt}, 2")
e(f"s_add_u32 s{sT0}, s{sT0}, s{sWave}")
e(f"s_mul_i32 s{sXbase}, s{sT0}, 28672")
e(f"s_mul_i32 s{sWbase}, s{sWave}, {16*3584}")
e(f"s_lshl_b32 s{sT0}, s{sFt}, 8")
e(f"s_add_u32 s{sWbase}, s{sWbase}, s{sT0}")
e(f"s_lshl_b32 s{sM0x}, s{sWave}, 12")
e(f"s_add_u32 s{sM0w}, s{sM0x}, 16384")
e(f"s_mov_b32 s{sC}, s{sRot}")
e("s_waitcnt lgkmcnt(0)")
def srd(d, p, n):
    e(f"s_mov_b32 s{d}, s{p}"); e(f"s_mov_b32 s{d+1}, s{p+1}"); e(f"s_mov_b32 s{d+2}, {n}"); e(f"s_mov_b32 s{d+3}, 0x20000")
srd(SX, 4, 1835008); srd(SW1, 6, 1605632)
stamp()

def dma_chunk_ops(i):
    slot = (i % 3) * 32768
    ops = []
    def setup():
        e(f"s_lshl_b32 s{sT2}, s{sC}, 7")
        e(f"s_add_u32 s{sT2}, s{sT2}, s{sXbase}")
        e(f"s_mul_i32 s{sT3}, s{sC}, {64*3584}")
        e(f"s_add_u32 s{sT3}, s{sT3}, s{sWbase}")
        e(f"s_add_u32 s{sC}, s{sC}, 1")
        e(f"s_cmp_ge_u32 s{sC}, 7")
        e(f"s_cselect_b32 s{sC}, 0, s{sC}")
    for q in range(4):
        def fx(q=q):
            if q == 0: setup()
            e(f"s_add_u32 m0, s{sM0x}, {slot + q*1024}")
            e("s_nop 0")
            e(f"buffer_load_dwordx4 v{vXo[q]}, {sr(SX,4)}, s{sT2} offen lds"); VM.issue(f"c{i}")
        def fw(q=q):
            e(f"s_add_u32 m0, s{sM0w}, {slot + q*1024}")
            e("s_nop 0")
            e(f"buffer_load_dwordx4 v{vWo[q]}, {sr(SW1,4)}, s{sT3} offen lds"); VM.issue(f"c{i}")
        ops += [fx, fw]
    return ops

for f in dma_chunk_ops(0): f()
srd(SB1, 8, 3584); srd(SWS, 18, 0x10000000); srd(SDBG, 16, 256)
e(f"v_lshrrev_b32 v{t0}, 5, v{vLane}")
e(f"v_lshlrev_b32 v{t0}, 3, v{t0}")
e(f"s_and_b32 s{sT0}, s{sWave}, 1")
e(f"s_lshl_b32 s{sT0}, s{sT0}, 7")
e(f"s_lshl_b32 s{sT1}, s{sFt}, 8")
e(f"s_add_u32 s{sT0}, s{sT0}, s{sT1}")
for ti in range(2):
    for q in range(4):
        e(f"buffer_load_dwordx2 {vr(RAW + 8*ti + 2*q, 2)}, v{t0}, {sr(SB1,4)}, s{sT0} offen offset:{64*ti + 16*q}"); VM.issue("b1")
e(f"v_and_b32 v{t1}, 31, v{vLane}")
e(f"v_lshrrev_b32 v{t2}, 3, v{t1}")
e(f"v_and_b32 v{t3}, 7, v{t1}")
e(f"v_lshlrev_b32 v{t2}, 7, v{t2}")
e(f"v_lshl_add_u32 v{t2}, v{t3}, 2, v{t2}")
e(f"s_lshl_b32 s{sT1}, s{sM2c}, 9")
e(f"s_add_u32 s{sT1}, s{sT1}, {FLAGS_OFF}")
vOld = vT[8]
e(f"buffer_load_dword v{vOld}, v{t2}, {sr(SWS,4)}, s{sT1} offen sc1"); VM.issue("old")
for f in dma_chunk_ops(1): f()
for f in dma_chunk_ops(2): f()
srd(SW2, 10, 1605632); srd(SOUT, 14, 1835008); srd(SB2, 12, 896)
e(f"v_and_b32 v{t0}, 31, v{vLane}")
e(f"v_lshrrev_b32 v{t1}, 5, v{vLane}")
e(f"v_bfe_u32 v{t2}, v{vLane}, 1, 3")
e(f"v_xor_b32 v{t2}, v{t2}, v{t1}")
e(f"s_lshr_b32 s{sT0}, s{sWave}, 1")
e(f"s_lshl_b32 s{sT0}, s{sT0}, 13")
e(f"v_lshlrev_b32 v{t0}, 7, v{t0}")
e(f"v_add_u32 v{t0}, s{sT0}, v{t0}")
for s in range(4):
    e(f"v_xor_b32 v{t3}, {2*s}, v{t2}")
    e(f"v_lshl_add_u32 v{vAB[s]}, v{t3}, 4, v{t0}")
    e(f"v_add_u32 v{vAB2[s]}, 65536, v{vAB[s]}")
e(f"v_bfe_u32 v{t0}, v{vLane}, 2, 2")
e(f"v_and_b32 v{t2}, 3, v{vLane}")
e(f"v_bfe_u32 v{t3}, v{vLane}, 4, 1")
e(f"v_lshlrev_b32 v{t2}, 3, v{t2}")
e(f"v_lshl_add_u32 v{t2}, v{t3}, 5, v{t2}")
e(f"v_lshl_add_u32 v{t3}, v{t1}, 3, v{t0}")
e(f"v_lshl_add_u32 v{t3}, v{t3}, 8, v{t2}")
e(f"v_add_u32 v{t3}, 16384, v{t3}")
e(f"s_and_b32 s{sT0}, s{sWave}, 1")
e(f"s_lshl_b32 s{sT0}, s{sT0}, 1")
for ti in range(2):
    e(f"s_add_u32 s{sT1}, s{sT0}, {ti}")
    e(f"v_xor_b32 v{t4}, s{sT1}, v{t0}")
    e(f"v_lshl_add_u32 v{vAA[ti]}, v{t4}, 6, v{t3}")
    e(f"v_add_u32 v{vAA2[ti]}, 65536, v{vAA[ti]}")
e(f"s_lshl_b32 s{sStage}, s{sWave}, 14")
e(f"s_add_u32 s{sStage}, s{sStage}, 98304")
e(f"v_lshl_add_u32 v{t3}, v{t1}, 2, v{t0}")
e(f"v_lshl_add_u32 v{t3}, v{t3}, 7, v{t2}")
e(f"v_add_u32 v{t3}, s{sStage}, v{t3}")
e(f"v_lshrrev_b32 v{t4}, 1, v{t0}")
e(f"v_lshl_add_u32 v{vAW2[0]}, v{t4}, 6, v{t3}")
e(f"v_xor_b32 v{t4}, 1, v{t4}")
e(f"v_lshl_add_u32 v{vAW2[1]}, v{t4}, 6, v{t3}")
e(f"v_lshlrev_b32 v{vH0}, 4, v{vLane}")
e(f"v_add_u32 v{vH1}, 114688, v{vH0}")
e(f"s_mul_i32 s{sW2base}, s{sWave}, {448*896}")
e(f"s_lshl_b32 s{sT0}, s{sFtl}, 7")
e(f"s_add_u32 s{sW2base}, s{sW2base}, s{sT0}")
e(f"v_and_b32 v{t0}, 7, v{vLane}")
e(f"v_min_u32 v{t0}, 6, v{t0}")
e(f"s_lshl_b32 s{sT0}, s{sM2c}, 2")
e(f"s_add_u32 s{sT0}, s{sT0}, s{sWave}")
e(f"s_lshl_b32 s{sT0}, s{sT0}, 7")
e(f"s_add_u32 s{sT0}, s{sT0}, {FLAGS_OFF}")
e(f"v_lshlrev_b32 v{t0}, 2, v{t0}")
e(f"v_add_u32 v{vFlagC}, s{sT0}, v{t0}")
e(f"s_lshr_b32 s{sT0}, s{sWave}, 1")
e(f"s_lshl_b32 s{sT1}, s{sMt}, 1")
e(f"s_add_u32 s{sT0}, s{sT0}, s{sT1}")
e(f"s_mov_b32 s3, s{sT0}")
e(f"s_and_b32 s{sT1}, s{sWave}, 1")
e(f"s_lshl_b32 s{sT2}, s{sFt}, 1")
e(f"s_add_u32 s{sT1}, s{sT1}, s{sT2}")
e(f"s_mul_i32 s{sT2}, s{sT1}, 37")
e(f"s_lshr_b32 s{sT2}, s{sT2}, 8")
e(f"s_mul_i32 s{sT3}, s{sT2}, 7")
e(f"s_sub_u32 s{sT1}, s{sT1}, s{sT3}")
e(f"s_lshl_b32 s{sT0}, s{sT0}, 2")
e(f"s_add_u32 s{sT0}, s{sT0}, s{sT2}")
e(f"s_lshl_b32 s{sT0}, s{sT0}, 7")
e(f"s_lshl_b32 s{sT1}, s{sT1}, 2")
e(f"s_add_u32 s{sT0}, s{sT0}, s{sT1}")
e(f"s_add_u32 s{sT0}, s{sT0}, {FLAGS_OFF}")
e(f"v_mov_b32 v{vFlagP}, s{sT0}")

wait(vm=["c0", "b1", "old"])
stamp()
for ti in range(2):
    for q in range(4):
        for d in range(2):
            src = RAW + 8*ti + 2*q + d
            e(f"v_lshlrev_b32 v{BIAS + 16*ti + 4*q + 2*d}, 16, v{src}")
            e(f"v_and_b32 v{BIAS + 16*ti + 4*q + 2*d + 1}, 0xffff0000, v{src}")
e(f"s_or_b32 s{sT0}, s{sFtl}, s{sWave}")
e(f"s_cmp_lg_u32 s{sT0}, 0")
e("s_cbranch_scc1 L_noleader")
e(f"v_and_b32 v{t1}, 31, v{vLane}")
e(f"v_lshrrev_b32 v{t2}, v{t1}, v{vOld}")
e(f"v_and_b32 v{t2}, 1, v{t2}")
e(f"v_cmp_eq_u32 vcc, 0, v{t2}")
e("s_nop 4")
e(f"s_or_b32 s{sT0}, vcc_lo, 0x80808080")
e(f"s_lshl_b32 s{sT1}, s{sM2c}, 2")
e(f"v_mov_b32 v{t2}, s{sT0}")
e(f"v_mov_b32 v{t3}, s{sT1}")
e(f"buffer_store_dword v{t2}, v{t3}, {sr(SDBG,4)}, 0 offen sc1")
lab("L_noleader")
e("s_barrier")

def reads(i, s):
    slot = i % 3
    fb = FRAG + 16 * s
    aA = vAA if slot < 2 else vAA2
    aB = vAB if slot < 2 else vAB2
    so = (slot % 2) * 32768
    for ti in range(2):
        for e2 in range(2):
            e(f"ds_read_b64_tr_b16 {vr(fb + 4*ti + 2*e2, 2)}, v{aA[ti]} offset:{so + s*4096 + e2*1024}"); LG.issue(f"r{i}_{s}")
    for mi in range(2):
        e(f"ds_read_b128 {vr(fb + 8 + 4*mi, 4)}, v{aB[s]} offset:{so + mi*4096}"); LG.issue(f"r{i}_{s}")
def mfma1(i, s, ti, mi):
    fb = FRAG + 16 * s
    c = vr(BIAS + 16*ti, 16) if (i == 0 and s == 0) else vr(acc(ti, mi), 16)
    e(f"v_mfma_f32_32x32x16_bf16 {vr(acc(ti,mi),16)}, {vr(fb+4*ti,4)}, {vr(fb+8+4*mi,4)}, {c}")
def mfma_step(i, s, extra):
    for k, (ti, mi) in enumerate([(0,0),(0,1),(1,0),(1,1)]):
        mfma1(i, s, ti, mi)
        if extra and k % 2 == 1 or (extra and len(extra) > 8):
            extra.pop(0)()

def w2_dma_ops(v):
    ops = []
    def setup():
        e(f"s_mul_i32 s{sT2}, s{sC}, {64*896}")
        e(f"s_add_u32 s{sT2}, s{sT2}, s{sW2base}")
        e(f"s_add_u32 s{sC}, s{sC}, 1")
        e(f"s_cmp_ge_u32 s{sC}, 7")
        e(f"s_cselect_b32 s{sC}, 0, s{sC}")
    for q in range(8):
        def f(q=q):
            if q == 0: setup()
            e(f"s_add_u32 m0, s{sStage}, {(v&1)*8192 + q*1024}")
            if q: e(f"s_add_u32 s{sT2}, s{sT2}, {8*896}")
            else: e("s_nop 0")
            e(f"buffer_load_dwordx4 v{vW2o}, {sr(SW2,4)}, s{sT2} offen lds"); VM.issue(f"w2_{v}")
        ops.append(f)
    return ops
def w2_reads(v):
    ops = []
    for s in range(4):
        for t in range(2):
            for e2 in range(2):
                def f(s=s, t=t, e2=e2):
                    e(f"ds_read_b64_tr_b16 {ar(32*v + 8*s + 4*t + 2*e2, 2)}, v{vAW2[t]} offset:{(v&1)*8192 + s*2048 + e2*1024}"); LG.issue(f"w2r{v}")
                ops.append(f)
    return ops

reads(0, 0); reads(0, 1)
for i in range(6):
    extra = []
    if 1 <= i <= 4: extra = dma_chunk_ops(i + 2)
    if i == 5: extra = w2_dma_ops(0)
    reads(i, 2)
    wait(lg=f"r{i}_0")
    mfma_step(i, 0, extra)
    reads(i, 3)
    wait(lg=f"r{i}_1")
    mfma_step(i, 1, extra)
    wait(lg=f"r{i}_2")
    mfma_step(i, 2, extra)
    while extra: extra.pop(0)()
    if i == 4:
        e(f"s_lshl_b32 s{sT0}, s3, 2")
        e(f"s_lshl_b32 s{sT1}, s{sM2c}, 2")
        e(f"v_mov_b32 v{t0}, 0")
        e(f"buffer_load_dword v{vNonP}, v{t0}, {sr(SDBG,4)}, s{sT0} offen sc1"); VM.issue("non")
        e(f"buffer_load_dword v{vNonC}, v{t0}, {sr(SDBG,4)}, s{sT1} offen sc1"); VM.issue("non")
    wait(vm=f"c{i+1}", lg=f"r{i}_3")
    e("s_barrier")
    reads(i + 1, 0); reads(i + 1, 1)
    mfma_step(i, 3, [])
i = 6
stamp_later = True
reads(6, 2); reads(6, 3)
for f in w2_dma_ops(1): f()
wait_all_lg()
stamp()
wait_all_lg()
C0, C1, ONE = vT[24], vT[26], vT[28]
import struct
def fbits(x): return "0x%08x" % struct.unpack("<I", struct.pack("<f", x))[0]
c0 = -2.0 * 0.7978845608028654 * 1.4426950408889634
c1 = c0 * 0.044715
for r, val in ((C0, c0), (C1, c1), (ONE, 1.0)):
    e(f"v_mov_b32 v{r}, {fbits(val)}"); e(f"v_mov_b32 v{r+1}, {fbits(val)}")
tiles = [(0,0),(0,1),(1,0),(1,1)]
for (ti, mi) in tiles:
    for s in range(4): mfma1(6, s, ti, mi)
e(f"s_lshl_b32 s{sT0}, s3, 1")
e(f"s_mul_i32 s{sT0}, s{sT0}, 112")
e(f"s_lshl_b32 s{sT1}, s{sFt}, 3")
e(f"s_add_u32 s{sT0}, s{sT0}, s{sT1}")
e(f"s_and_b32 s{sT1}, s{sWave}, 1")
e(f"s_lshl_b32 s{sT1}, s{sT1}, 2")
e(f"s_add_u32 s{sT0}, s{sT0}, s{sT1}")
e(f"s_lshl_b32 s{sHoff}, s{sT0}, 10")
def gelu_tile(ti, mi, pk, side):
    a = acc(ti, mi)
    T = vT[0:16]
    for g in range(2):
        base = a + 8*g
        tt = T[8*(g%2): 8*(g%2)+8]
        for p in range(4): e(f"v_pk_mul_f32 {vr(tt[2*p],2)}, {vr(base+2*p,2)}, {vr(base+2*p,2)}")
        for p in range(4): e(f"v_pk_fma_f32 {vr(tt[2*p],2)}, {vr(tt[2*p],2)}, {vr(C1,2)}, {vr(C0,2)}")
        for p in range(4): e(f"v_pk_mul_f32 {vr(tt[2*p],2)}, {vr(tt[2*p],2)}, {vr(base+2*p,2)}")
        if side: side.pop(0)()
        for p in range(8): e(f"v_exp_f32 v{tt[p]}, v{tt[p]}")
        if side: side.pop(0)()
        for p in range(4): e(f"v_pk_add_f32 {vr(tt[2*p],2)}, {vr(tt[2*p],2)}, {vr(ONE,2)}")
        if side: side.pop(0)()
        for p in range(8): e(f"v_rcp_f32 v{tt[p]}, v{tt[p]}")
        if side: side.pop(0)()
        for p in range(4): e(f"v_pk_mul_f32 {vr(tt[2*p],2)}, {vr(tt[2*p],2)}, {vr(base+2*p,2)}")
        for p in range(4): e(f"v_cvt_pk_bf16_f32 v{pk+4*g+p}, v{tt[2*p]}, v{tt[2*p+1]}")
        voff = vH0 if mi == 0 else vH1
        e(f"buffer_store_dwordx4 {vr(pk+4*g,4)}, v{voff}, {sr(SWS,4)}, s{sHoff} offen offset:{(2*ti+g)*1024} sc1"); VM.issue("hst")
e("s_nop 7")
for k, (ti, mi) in enumerate(tiles):
    gelu_tile(ti, mi, BIAS + 8*k, [])
stamp()
def w2_stage(v):
    wait(vm=f"w2_{v}")
    for f in w2_reads(v): f()
    wait_all_lg()
    if v + 2 < 7:
        for f in w2_dma_ops(v + 2): f()
w2_stage(0)
w2_stage(1)
wait(vm=["hst", "non"])
stamp()
lab("L_nonp")
e(f"v_cmp_ne_u32 vcc, 0, v{vNonP}")
e("s_cbranch_vccnz L_nonp_ok")
e(f"s_lshl_b32 s{sT0}, s3, 2")
e(f"v_mov_b32 v{t0}, 0")
e("s_sleep 2")
e(f"buffer_load_dword v{vNonP}, v{t0}, {sr(SDBG,4)}, s{sT0} offen sc1")
e("s_waitcnt vmcnt(0)")
e("s_branch L_nonp")
lab("L_nonp_ok")
e(f"buffer_store_dword v{vNonP}, v{vFlagP}, {sr(SWS,4)}, 0 offen sc1"); VM.issue("flag")
for v in range(2, 7): w2_stage(v)
stamp()
e(f"v_lshrrev_b32 v{t0}, 5, v{vLane}")
e(f"v_lshlrev_b32 v{t0}, 3, v{t0}")
e(f"s_lshr_b32 s{sT0}, s{sWave}, 1")
e(f"s_lshl_b32 s{sT0}, s{sT0}, 6")
e(f"s_lshl_b32 s{sT1}, s{sFtl}, 7")
e(f"s_add_u32 s{sT0}, s{sT0}, s{sT1}")
B2R = vT[16]
for q in range(4):
    e(f"buffer_load_dwordx2 {vr(B2R + 2*q, 2)}, v{t0}, {sr(SB2,4)}, s{sT0} offen offset:{16*q}"); VM.issue("b2")
lab("L_nonc")
e(f"v_cmp_ne_u32 vcc, 0, v{vNonC}")
e("s_cbranch_vccnz L_nonc_ok")
e(f"s_lshl_b32 s{sT0}, s{sM2c}, 2")
e(f"v_mov_b32 v{t1}, 0")
e("s_sleep 2")
e(f"buffer_load_dword v{vNonC}, v{t1}, {sr(SDBG,4)}, s{sT0} offen sc1")
e("s_waitcnt vmcnt(0)")
e("s_branch L_nonc")
lab("L_nonc_ok")
e(f"s_mov_b32 s{sT3}, 0")
lab("L_poll")
e(f"buffer_load_dword v{t1}, v{vFlagC}, {sr(SWS,4)}, 0 offen sc1")
e("s_waitcnt vmcnt(0)")
e(f"v_cmp_ne_u32 vcc, v{t1}, v{vNonC}")
e("s_cbranch_vccz L_go")
e(f"s_add_u32 s{sT3}, s{sT3}, 1")
e(f"s_cmp_lt_u32 s{sT3}, 0x40000")
e("s_sleep 1")
e("s_cbranch_scc1 L_poll")
lab("L_go")
VM.drain()
stamp()
HB = 128
e(f"s_lshl_b32 s{sT0}, s{sM2c}, 1")
e(f"s_mul_i32 s{sT0}, s{sT0}, 112")
e(f"s_mul_i32 s{sT1}, s{sWave}, 28")
e(f"s_add_u32 s{sT0}, s{sT0}, s{sT1}")
e(f"s_lshl_b32 s{sHoff}, s{sT0}, 10")
e(f"s_mov_b32 s{sC}, s{sRot}")
def h_ops(v):
    ops = []
    def setup():
        e(f"s_lshl_b32 s{sT2}, s{sC}, 12")
        e(f"s_add_u32 s{sT2}, s{sT2}, s{sHoff}")
        e(f"s_add_u32 s{sC}, s{sC}, 1")
        e(f"s_cmp_ge_u32 s{sC}, 7")
        e(f"s_cselect_b32 s{sC}, 0, s{sC}")
    for s in range(4):
        for mi in range(2):
            def f(s=s, mi=mi):
                if s == 0 and mi == 0: setup()
                r = HB + 32*(v%4) + 8*s + 4*mi
                e(f"buffer_load_dwordx4 {vr(r,4)}, v{vH0 if mi==0 else vH1}, {sr(SWS,4)}, s{sT2} offen offset:{s*1024} sc1"); VM.issue(f"h{v}_{s}")
            ops.append(f)
    return ops
for f in h_ops(0): f()
for f in h_ops(1): f()
for v in range(7):
    extra = h_ops(v + 2) if v + 2 < 7 else []
    for s in range(4):
        wait(vm=f"h{v}_{s}")
        for k, (t, mi) in enumerate([(0,0),(0,1),(1,0),(1,1)]):
            r = HB + 32*(v%4) + 8*s + 4*mi
            c = "0" if (v == 0 and s == 0) else vr(acc(t,mi),16)
            e(f"v_mfma_f32_32x32x16_bf16 {vr(acc(t,mi),16)}, {ar(32*v + 8*s + 4*t, 4)}, {vr(r,4)}, {c}")
            if extra and k % 2 == 1: extra.pop(0)()
stamp()
e("s_nop 15")
RED = 32768
for o in range(4):
    e(f"s_cmp_eq_u32 s{sWave}, {o}")
    e(f"s_cbranch_scc1 L_skipw{o}")
    e(f"s_sub_u32 s{sT0}, s{sWave}, {o+1}")
    e(f"s_and_b32 s{sT0}, s{sT0}, 3")
    e(f"s_lshl_b32 s{sT0}, s{sT0}, 12")
    e(f"s_add_u32 s{sT0}, s{sT0}, {RED}")
    e(f"v_add_u32 v{t0}, s{sT0}, v{vH0}")
    for q in range(4):
        e(f"ds_write_b128 v{t0}, {vr(ACC + 16*o + 4*q, 4)} offset:{o*12288 + q*1024}")
    lab(f"L_skipw{o}")
OWN = 128
for o in range(4):
    e(f"s_cmp_lg_u32 s{sWave}, {o}")
    e(f"s_cbranch_scc1 L_skipm{o}")
    for r in range(16): e(f"v_mov_b32 v{OWN + r}, v{ACC + 16*o + r}")
    lab(f"L_skipm{o}")
e("s_waitcnt lgkmcnt(0)")
e("s_barrier")
e(f"s_mul_i32 s{sT0}, s{sWave}, 12288")
e(f"v_add_u32 v{t0}, s{sT0}, v{vH0}")
RD = 144
for sl in range(3):
    for q in range(4):
        e(f"ds_read_b128 {vr(RD + 16*sl + 4*q, 4)}, v{t0} offset:{RED + sl*4096 + q*1024}")
BB = 192
for q in range(4):
    for d in range(2):
        e(f"v_lshlrev_b32 v{BB + 4*q + 2*d}, 16, v{B2R + 2*q + d}")
        e(f"v_and_b32 v{BB + 4*q + 2*d + 1}, 0xffff0000, v{B2R + 2*q + d}")
for p in range(8): e(f"v_pk_add_f32 {vr(OWN+2*p,2)}, {vr(OWN+2*p,2)}, {vr(BB+2*p,2)}")
e(f"v_and_b32 v{t1}, 31, v{vLane}")
e(f"v_lshrrev_b32 v{t2}, 5, v{vLane}")
e(f"v_mul_u32_u24 v{t1}, 896, v{t1}")
e(f"v_lshl_add_u32 v{t1}, v{t2}, 4, v{t1}")
e(f"s_lshl_b32 s{sT0}, s{sM2c}, 1")
e(f"s_and_b32 s{sT1}, s{sWave}, 1")
e(f"s_add_u32 s{sT0}, s{sT0}, s{sT1}")
e(f"s_mul_i32 s{sT0}, s{sT0}, {32*896}")
e(f"s_lshl_b32 s{sT1}, s{sFtl}, 7")
e(f"s_add_u32 s{sT0}, s{sT0}, s{sT1}")
e(f"s_lshr_b32 s{sT1}, s{sWave}, 1")
e(f"s_lshl_b32 s{sT1}, s{sT1}, 6")
e(f"s_add_u32 s{sT0}, s{sT0}, s{sT1}")
for sl in range(3):
    e(f"s_waitcnt lgkmcnt({8 - 4*sl})")
    for p in range(8): e(f"v_pk_add_f32 {vr(OWN+2*p,2)}, {vr(OWN+2*p,2)}, {vr(RD+16*sl+2*p,2)}")
PK = 208
for p in range(8): e(f"v_cvt_pk_bf16_f32 v{PK+p}, v{OWN+2*p}, v{OWN+2*p+1}")
e("s_nop 1")
for qp in range(2):
    e(f"v_permlane32_swap_b32 v{PK+4*qp}, v{PK+4*qp+2}")
    e(f"v_permlane32_swap_b32 v{PK+4*qp+1}, v{PK+4*qp+3}")
for qp in range(2):
    e(f"buffer_store_dwordx4 {vr(PK+4*qp,4)}, v{t1}, {sr(SOUT,4)}, s{sT0} offen offset:{32*qp}")
if STAMPS:
    e("s_waitcnt vmcnt(0)")
    stamp()
    e("s_memrealtime s[4:5]")
    e("s_waitcnt lgkmcnt(0)")
    e(f"s_lshl_b32 s6, s2, 2")
    e(f"s_add_u32 s6, s6, s{sWave}")
    e(f"s_lshl_b32 s6, s6, 6")
    e(f"s_add_u32 s6, s6, 0x8000000")
    e("v_mov_b32 v4, s100"); e("v_mov_b32 v5, s4")
    for k in range(14):
        if k < nstamp[0]:
            e(f"s_sub_u32 s7, s{72+2*k}, s98"); e(f"v_mov_b32 v{6+k}, s7")
        else: e(f"v_mov_b32 v{6+k}, 0")
    e("v_mov_b32 v20, s6")
    e(f"v_cmp_eq_u32 vcc, 0, v{vLane}")
    e("s_and_saveexec_b64 s[8:9], vcc")
    for k in range(4):
        e(f"buffer_store_dwordx4 v[{4+4*k}:{7+4*k}], v20, {sr(SWS,4)}, 0 offen offset:{16*k}")
lab("L_end")
e("s_endpgm")
kd = f""".section .rodata,"a"
.p2align 6
.amdhsa_kernel {NAME}
  .amdhsa_next_free_vgpr 512
  .amdhsa_next_free_sgpr 102
  .amdhsa_accum_offset 256
  .amdhsa_group_segment_fixed_size 0
  .amdhsa_kernarg_size 64
  .amdhsa_user_sgpr_count 2
  .amdhsa_user_sgpr_kernarg_segment_ptr 1
  .amdhsa_system_sgpr_workgroup_id_x 1
.end_amdhsa_kernel
"""
open(OUT, "w").write(top + "\n".join(L) + "\n" + kd)
```

```python
import sys
STAMPS = int(sys.argv[2]) if len(sys.argv) > 2 else 0
OUT = sys.argv[1] if len(sys.argv) > 1 else "standalone__dense_activation_gelu__prompt.s"
NAME = "standalone__dense_activation_gelu__prompt_kernel"
NWG = 224
FLAGS_OFF = 0x800000
L = []
def e(s): L.append("  " + s)
def lab(s): L.append(s + ":")
def cmt(s): L.append("  ; " + s)

class Ctr:
    def __init__(self, name, maxv): self.q = []; self.name = name; self.maxv = maxv
    def issue(self, tag): self.q.append(tag)
    def need(self, tags):
        if isinstance(tags, str): tags = [tags]
        last = -1
        for i, t in enumerate(self.q):
            if t in tags: last = i
        if last < 0: return None
        n = len(self.q) - 1 - last
        self.q = self.q[last+1:]
        return min(n, self.maxv)
    def drain(self): self.q = []
VM = Ctr("vmcnt", 63); LG = Ctr("lgkmcnt", 15)
def wait(vm=None, lg=None):
    parts = []
    if vm is not None:
        n = VM.need(vm)
        if n is not None: parts.append(f"vmcnt({n})")
    if lg is not None:
        n = LG.need(lg)
        if n is not None: parts.append(f"lgkmcnt({n})")
    if parts: e("s_waitcnt " + " ".join(parts))
def wait_all_lg():
    LG.drain(); e("s_waitcnt lgkmcnt(0)")

nstamp = [0]
def stamp():
    if STAMPS:
        i = nstamp[0]; nstamp[0] += 1
        assert i < 14
        e(f"s_memtime s[{72+2*i}:{73+2*i}]")
SX, SW1, SW2, SWS, SOUT, SB1, SB2, SDBG = 20, 24, 28, 32, 36, 40, 44, 48
sWave, sXcd, sMtl, sFtl, sMt, sFt, sRot, sM2c = 52, 53, 54, 55, 56, 57, 58, 59
sT0, sT1, sT2, sT3 = 60, 61, 62, 63
sXbase, sWbase, sM0x, sM0w, sC = 64, 65, 66, 67, 68
sHoff, sW2base, sStage = 69, 70, 71
vLane = 1
vXo = [2, 3, 4, 5]; vWo = [6, 7, 8, 9]
vAB = [10, 11, 12, 13]; vAB2 = [14, 15, 16, 17]
vAA = [18, 19]; vAA2 = [20, 21]
vW2o = 22; vAW2 = [23, 24]
vH0, vH1 = 25, 26
vFlagP, vFlagC, vNonP, vNonC = 27, 28, 29, 30
vT = list(range(32, 64))
ACC = 64; BIAS = 128; FRAG = 160; RAW = 224
def acc(ti, mi): return ACC + 16 * (2 * ti + mi)
def vr(a, n): return f"v[{a}:{a+n-1}]"
def ar(a, n): return f"a[{a}:{a+n-1}]"
def sr(a, n): return f"s[{a}:{a+n-1}]"

hdr = open("standalone__dense_activation_gelu__prompt.s.ref").read().split("; Override")[0]
top = hdr + f"; Fused MLP: phase 1 h=gelu(x@w1+b1) tiles -> d_ws (write-through), flags, phase 2 out=h@w2+b2.\n; @launch grid=({NWG},1,1) block=(256,1,1) lds=163840\n"
top += f'.amdgcn_target "amdgcn-amd-amdhsa--gfx950"\n.text\n.globl {NAME}\n.p2align 8\n.type {NAME},@function\n{NAME}:\n'

if STAMPS:
    e("s_memrealtime s[100:101]")
    e("s_memtime s[98:99]")
e(f"s_cmp_ge_u32 s2, {NWG}")
e("s_cbranch_scc1 L_end")
e("s_load_dwordx16 s[4:19], s[0:1], 0")
e(f"v_and_b32 v{vLane}, 63, v0")
e(f"v_lshrrev_b32 v{vT[0]}, 6, v0")
e(f"s_and_b32 s{sXcd}, s2, 7")
e(f"v_readfirstlane_b32 s{sWave}, v{vT[0]}")
e(f"s_lshr_b32 s{sT0}, s2, 3")
e(f"s_mul_i32 s{sMtl}, s{sT0}, 37")
e(f"s_lshr_b32 s{sMtl}, s{sMtl}, 8")
e(f"s_mul_i32 s{sT1}, s{sMtl}, 7")
e(f"s_sub_u32 s{sFtl}, s{sT0}, s{sT1}")
e(f"s_lshr_b32 s{sMt}, s{sXcd}, 1")
e(f"s_lshl_b32 s{sMt}, s{sMt}, 2")
e(f"s_add_u32 s{sMt}, s{sMt}, s{sMtl}")
e(f"s_and_b32 s{sFt}, s{sXcd}, 1")
e(f"s_mul_i32 s{sFt}, s{sFt}, 7")
e(f"s_add_u32 s{sFt}, s{sFt}, s{sFtl}")
e(f"s_lshl_b32 s{sM2c}, s{sXcd}, 2")
e(f"s_add_u32 s{sM2c}, s{sM2c}, s{sMtl}")
e(f"s_lshl_b32 s{sRot}, s{sMtl}, 1")
e(f"s_add_u32 s{sRot}, s{sRot}, s{sFtl}")
e(f"s_add_u32 s{sRot}, s{sRot}, s{sXcd}")
e(f"s_mul_i32 s{sT0}, s{sRot}, 37")
e(f"s_lshr_b32 s{sT0}, s{sT0}, 8")
e(f"s_mul_i32 s{sT0}, s{sT0}, 7")
e(f"s_sub_u32 s{sRot}, s{sRot}, s{sT0}")
t0, t1, t2, t3, t4, t5 = vT[0:6]
e(f"v_lshrrev_b32 v{t0}, 3, v{vLane}")
e(f"v_and_b32 v{t1}, 7, v{vLane}")
e(f"v_lshrrev_b32 v{t2}, 1, v{t0}")
e(f"v_xor_b32 v{t3}, v{t1}, v{t2}")
e(f"v_xor_b32 v{t4}, 4, v{t3}")
e(f"v_mul_u32_u24 v{t5}, 896, v{t0}")
e(f"v_lshl_add_u32 v{vXo[0]}, v{t3}, 4, v{t5}")
e(f"v_lshl_add_u32 v{vXo[1]}, v{t4}, 4, v{t5}")
e(f"v_add_u32 v{vXo[1]}, {8*896}, v{vXo[1]}")
e(f"v_add_u32 v{vXo[2]}, {16*896}, v{vXo[0]}")
e(f"v_add_u32 v{vXo[3]}, {16*896}, v{vXo[1]}")
e(f"v_and_b32 v{t2}, 1, v{t2}")
e(f"v_lshlrev_b32 v{t2}, 2, v{t2}")
e(f"v_xor_b32 v{t2}, v{t1}, v{t2}")
e(f"v_lshl_add_u32 v{vW2o}, v{t2}, 4, v{t5}")
e(f"v_lshrrev_b32 v{t0}, 4, v{vLane}")
e(f"v_bfe_u32 v{t1}, v{vLane}, 2, 2")
e(f"v_xor_b32 v{t1}, v{t1}, v{t0}")
e(f"v_and_b32 v{t2}, 3, v{vLane}")
e(f"v_mul_u32_u24 v{t5}, 3584, v{t0}")
e(f"v_lshl_add_u32 v{t5}, v{t1}, 6, v{t5}")
e(f"v_lshl_add_u32 v{vWo[0]}, v{t2}, 4, v{t5}")
for q in range(1, 4):
    e(f"v_add_u32 v{vWo[q]}, {q*4*3584}, v{vWo[0]}")
e(f"s_lshl_b32 s{sT0}, s{sMt}, 2")
e(f"s_add_u32 s{sT0}, s{sT0}, s{sWave}")
e(f"s_mul_i32 s{sXbase}, s{sT0}, 28672")
e(f"s_mul_i32 s{sWbase}, s{sWave}, {16*3584}")
e(f"s_lshl_b32 s{sT0}, s{sFt}, 8")
e(f"s_add_u32 s{sWbase}, s{sWbase}, s{sT0}")
e(f"s_lshl_b32 s{sM0x}, s{sWave}, 12")
e(f"s_add_u32 s{sM0w}, s{sM0x}, 16384")
e(f"s_mov_b32 s{sC}, s{sRot}")
e("s_waitcnt lgkmcnt(0)")
def srd(d, p, n):
    e(f"s_mov_b32 s{d}, s{p}"); e(f"s_mov_b32 s{d+1}, s{p+1}"); e(f"s_mov_b32 s{d+2}, {n}"); e(f"s_mov_b32 s{d+3}, 0x20000")
srd(SX, 4, 1835008); srd(SW1, 6, 1605632)
stamp()

def dma_chunk_ops(i):
    slot = (i % 3) * 32768
    ops = []
    def setup():
        e(f"s_lshl_b32 s{sT2}, s{sC}, 7")
        e(f"s_add_u32 s{sT2}, s{sT2}, s{sXbase}")
        e(f"s_mul_i32 s{sT3}, s{sC}, {64*3584}")
        e(f"s_add_u32 s{sT3}, s{sT3}, s{sWbase}")
        e(f"s_add_u32 s{sC}, s{sC}, 1")
        e(f"s_cmp_ge_u32 s{sC}, 7")
        e(f"s_cselect_b32 s{sC}, 0, s{sC}")
    for q in range(4):
        def fx(q=q):
            if q == 0: setup()
            e(f"s_add_u32 m0, s{sM0x}, {slot + q*1024}")
            e("s_nop 0")
            e(f"buffer_load_dwordx4 v{vXo[q]}, {sr(SX,4)}, s{sT2} offen lds"); VM.issue(f"c{i}")
        def fw(q=q):
            e(f"s_add_u32 m0, s{sM0w}, {slot + q*1024}")
            e("s_nop 0")
            e(f"buffer_load_dwordx4 v{vWo[q]}, {sr(SW1,4)}, s{sT3} offen lds"); VM.issue(f"c{i}")
        ops += [fx, fw]
    return ops

for f in dma_chunk_ops(0): f()
srd(SB1, 8, 3584); srd(SWS, 18, 0x10000000); srd(SDBG, 16, 256)
e(f"v_lshrrev_b32 v{t0}, 5, v{vLane}")
e(f"v_lshlrev_b32 v{t0}, 3, v{t0}")
e(f"s_and_b32 s{sT0}, s{sWave}, 1")
e(f"s_lshl_b32 s{sT0}, s{sT0}, 7")
e(f"s_lshl_b32 s{sT1}, s{sFt}, 8")
e(f"s_add_u32 s{sT0}, s{sT0}, s{sT1}")
for ti in range(2):
    for q in range(4):
        e(f"buffer_load_dwordx2 {vr(RAW + 8*ti + 2*q, 2)}, v{t0}, {sr(SB1,4)}, s{sT0} offen offset:{64*ti + 16*q}"); VM.issue("b1")
e(f"v_and_b32 v{t1}, 31, v{vLane}")
e(f"v_lshrrev_b32 v{t2}, 3, v{t1}")
e(f"v_and_b32 v{t3}, 7, v{t1}")
e(f"v_lshlrev_b32 v{t2}, 7, v{t2}")
e(f"v_lshl_add_u32 v{t2}, v{t3}, 2, v{t2}")
e(f"s_lshl_b32 s{sT1}, s{sM2c}, 9")
e(f"s_add_u32 s{sT1}, s{sT1}, {FLAGS_OFF}")
vOld = vT[8]
e(f"buffer_load_dword v{vOld}, v{t2}, {sr(SWS,4)}, s{sT1} offen sc1"); VM.issue("old")
for f in dma_chunk_ops(1): f()
for f in dma_chunk_ops(2): f()
srd(SW2, 10, 1605632); srd(SOUT, 14, 1835008); srd(SB2, 12, 896)
e(f"v_and_b32 v{t0}, 31, v{vLane}")
e(f"v_lshrrev_b32 v{t1}, 5, v{vLane}")
e(f"v_bfe_u32 v{t2}, v{vLane}, 1, 3")
e(f"v_xor_b32 v{t2}, v{t2}, v{t1}")
e(f"s_lshr_b32 s{sT0}, s{sWave}, 1")
e(f"s_lshl_b32 s{sT0}, s{sT0}, 13")
e(f"v_lshlrev_b32 v{t0}, 7, v{t0}")
e(f"v_add_u32 v{t0}, s{sT0}, v{t0}")
for s in range(4):
    e(f"v_xor_b32 v{t3}, {2*s}, v{t2}")
    e(f"v_lshl_add_u32 v{vAB[s]}, v{t3}, 4, v{t0}")
    e(f"v_add_u32 v{vAB2[s]}, 65536, v{vAB[s]}")
e(f"v_bfe_u32 v{t0}, v{vLane}, 2, 2")
e(f"v_and_b32 v{t2}, 3, v{vLane}")
e(f"v_bfe_u32 v{t3}, v{vLane}, 4, 1")
e(f"v_lshlrev_b32 v{t2}, 3, v{t2}")
e(f"v_lshl_add_u32 v{t2}, v{t3}, 5, v{t2}")
e(f"v_lshl_add_u32 v{t3}, v{t1}, 3, v{t0}")
e(f"v_lshl_add_u32 v{t3}, v{t3}, 8, v{t2}")
e(f"v_add_u32 v{t3}, 16384, v{t3}")
e(f"s_and_b32 s{sT0}, s{sWave}, 1")
e(f"s_lshl_b32 s{sT0}, s{sT0}, 1")
for ti in range(2):
    e(f"s_add_u32 s{sT1}, s{sT0}, {ti}")
    e(f"v_xor_b32 v{t4}, s{sT1}, v{t0}")
    e(f"v_lshl_add_u32 v{vAA[ti]}, v{t4}, 6, v{t3}")
    e(f"v_add_u32 v{vAA2[ti]}, 65536, v{vAA[ti]}")
e(f"s_lshl_b32 s{sStage}, s{sWave}, 14")
e(f"s_add_u32 s{sStage}, s{sStage}, 98304")
e(f"v_lshl_add_u32 v{t3}, v{t1}, 2, v{t0}")
e(f"v_lshl_add_u32 v{t3}, v{t3}, 7, v{t2}")
e(f"v_add_u32 v{t3}, s{sStage}, v{t3}")
e(f"v_lshrrev_b32 v{t4}, 1, v{t0}")
e(f"v_lshl_add_u32 v{vAW2[0]}, v{t4}, 6, v{t3}")
e(f"v_xor_b32 v{t4}, 1, v{t4}")
e(f"v_lshl_add_u32 v{vAW2[1]}, v{t4}, 6, v{t3}")
e(f"v_lshlrev_b32 v{vH0}, 4, v{vLane}")
e(f"v_add_u32 v{vH1}, 114688, v{vH0}")
e(f"s_mul_i32 s{sW2base}, s{sWave}, {448*896}")
e(f"s_lshl_b32 s{sT0}, s{sFtl}, 7")
e(f"s_add_u32 s{sW2base}, s{sW2base}, s{sT0}")
e(f"v_and_b32 v{t0}, 7, v{vLane}")
e(f"v_min_u32 v{t0}, 6, v{t0}")
e(f"s_lshl_b32 s{sT0}, s{sM2c}, 2")
e(f"s_add_u32 s{sT0}, s{sT0}, s{sWave}")
e(f"s_lshl_b32 s{sT0}, s{sT0}, 7")
e(f"s_add_u32 s{sT0}, s{sT0}, {FLAGS_OFF}")
e(f"v_lshlrev_b32 v{t0}, 2, v{t0}")
e(f"v_add_u32 v{vFlagC}, s{sT0}, v{t0}")
e(f"s_lshr_b32 s{sT0}, s{sWave}, 1")
e(f"s_lshl_b32 s{sT1}, s{sMt}, 1")
e(f"s_add_u32 s{sT0}, s{sT0}, s{sT1}")
e(f"s_mov_b32 s3, s{sT0}")
e(f"s_and_b32 s{sT1}, s{sWave}, 1")
e(f"s_lshl_b32 s{sT2}, s{sFt}, 1")
e(f"s_add_u32 s{sT1}, s{sT1}, s{sT2}")
e(f"s_mul_i32 s{sT2}, s{sT1}, 37")
e(f"s_lshr_b32 s{sT2}, s{sT2}, 8")
e(f"s_mul_i32 s{sT3}, s{sT2}, 7")
e(f"s_sub_u32 s{sT1}, s{sT1}, s{sT3}")
e(f"s_lshl_b32 s{sT0}, s{sT0}, 2")
e(f"s_add_u32 s{sT0}, s{sT0}, s{sT2}")
e(f"s_lshl_b32 s{sT0}, s{sT0}, 7")
e(f"s_lshl_b32 s{sT1}, s{sT1}, 2")
e(f"s_add_u32 s{sT0}, s{sT0}, s{sT1}")
e(f"s_add_u32 s{sT0}, s{sT0}, {FLAGS_OFF}")
e(f"v_mov_b32 v{vFlagP}, s{sT0}")

wait(vm=["c0", "b1", "old"])
stamp()
for ti in range(2):
    for q in range(4):
        for d in range(2):
            src = RAW + 8*ti + 2*q + d
            e(f"v_lshlrev_b32 v{BIAS + 16*ti + 4*q + 2*d}, 16, v{src}")
            e(f"v_and_b32 v{BIAS + 16*ti + 4*q + 2*d + 1}, 0xffff0000, v{src}")
e(f"s_or_b32 s{sT0}, s{sFtl}, s{sWave}")
e(f"s_cmp_lg_u32 s{sT0}, 0")
e("s_cbranch_scc1 L_noleader")
e(f"v_and_b32 v{t1}, 31, v{vLane}")
e(f"v_lshrrev_b32 v{t2}, v{t1}, v{vOld}")
e(f"v_and_b32 v{t2}, 1, v{t2}")
e(f"v_cmp_eq_u32 vcc, 0, v{t2}")
e("s_nop 4")
e(f"s_or_b32 s{sT0}, vcc_lo, 0x80808080")
e(f"s_lshl_b32 s{sT1}, s{sM2c}, 2")
e(f"v_mov_b32 v{t2}, s{sT0}")
e(f"v_mov_b32 v{t3}, s{sT1}")
e(f"buffer_store_dword v{t2}, v{t3}, {sr(SDBG,4)}, 0 offen offset:128 sc1")
lab("L_noleader")
e("s_barrier")

def reads(i, s):
    slot = i % 3
    fb = FRAG + 16 * s
    aA = vAA if slot < 2 else vAA2
    aB = vAB if slot < 2 else vAB2
    so = (slot % 2) * 32768
    for ti in range(2):
        for e2 in range(2):
            e(f"ds_read_b64_tr_b16 {vr(fb + 4*ti + 2*e2, 2)}, v{aA[ti]} offset:{so + s*4096 + e2*1024}"); LG.issue(f"r{i}_{s}")
    for mi in range(2):
        e(f"ds_read_b128 {vr(fb + 8 + 4*mi, 4)}, v{aB[s]} offset:{so + mi*4096}"); LG.issue(f"r{i}_{s}")
def mfma1(i, s, ti, mi):
    fb = FRAG + 16 * s
    c = vr(BIAS + 16*ti, 16) if (i == 0 and s == 0) else vr(acc(ti, mi), 16)
    e(f"v_mfma_f32_32x32x16_bf16 {vr(acc(ti,mi),16)}, {vr(fb+4*ti,4)}, {vr(fb+8+4*mi,4)}, {c}")
def mfma_step(i, s, extra):
    for k, (ti, mi) in enumerate([(0,0),(0,1),(1,0),(1,1)]):
        mfma1(i, s, ti, mi)
        if extra and k % 2 == 1 or (extra and len(extra) > 8):
            extra.pop(0)()

def w2_dma_ops(v):
    ops = []
    def setup():
        e(f"s_mul_i32 s{sT2}, s{sC}, {64*896}")
        e(f"s_add_u32 s{sT2}, s{sT2}, s{sW2base}")
        e(f"s_add_u32 s{sC}, s{sC}, 1")
        e(f"s_cmp_ge_u32 s{sC}, 7")
        e(f"s_cselect_b32 s{sC}, 0, s{sC}")
    for q in range(8):
        def f(q=q):
            if q == 0: setup()
            e(f"s_add_u32 m0, s{sStage}, {(v&1)*8192 + q*1024}")
            if q: e(f"s_add_u32 s{sT2}, s{sT2}, {8*896}")
            else: e("s_nop 0")
            e(f"buffer_load_dwordx4 v{vW2o}, {sr(SW2,4)}, s{sT2} offen lds"); VM.issue(f"w2_{v}")
        ops.append(f)
    return ops
def w2_reads(v):
    ops = []
    for s in range(4):
        for t in range(2):
            for e2 in range(2):
                def f(s=s, t=t, e2=e2):
                    e(f"ds_read_b64_tr_b16 {ar(32*v + 8*s + 4*t + 2*e2, 2)}, v{vAW2[t]} offset:{(v&1)*8192 + s*2048 + e2*1024}"); LG.issue(f"w2r{v}")
                ops.append(f)
    return ops

reads(0, 0); reads(0, 1)
for i in range(6):
    extra = []
    if 1 <= i <= 4: extra = dma_chunk_ops(i + 2)
    if i == 5: extra = w2_dma_ops(0)
    reads(i, 2)
    wait(lg=f"r{i}_0")
    mfma_step(i, 0, extra)
    reads(i, 3)
    wait(lg=f"r{i}_1")
    mfma_step(i, 1, extra)
    wait(lg=f"r{i}_2")
    mfma_step(i, 2, extra)
    while extra: extra.pop(0)()
    if i == 4:
        e(f"s_lshl_b32 s{sT0}, s3, 2")
        e(f"s_lshl_b32 s{sT1}, s{sM2c}, 2")
        e(f"v_mov_b32 v{t0}, 0")
        e(f"buffer_load_dword v{vNonP}, v{t0}, {sr(SDBG,4)}, s{sT0} offen offset:128 sc1"); VM.issue("non")
        e(f"buffer_load_dword v{vNonC}, v{t0}, {sr(SDBG,4)}, s{sT1} offen offset:128 sc1"); VM.issue("non")
    wait(vm=f"c{i+1}", lg=f"r{i}_3")
    e("s_barrier")
    reads(i + 1, 0); reads(i + 1, 1)
    mfma_step(i, 3, [])
i = 6
stamp_later = True
reads(6, 2); reads(6, 3)
for f in w2_dma_ops(1): f()
wait_all_lg()
stamp()
wait_all_lg()
C0, C1, ONE = vT[24], vT[26], vT[28]
import struct
def fbits(x): return "0x%08x" % struct.unpack("<I", struct.pack("<f", x))[0]
c0 = -2.0 * 0.7978845608028654 * 1.4426950408889634
c1 = c0 * 0.044715
for r, val in ((C0, c0), (C1, c1), (ONE, 1.0)):
    e(f"v_mov_b32 v{r}, {fbits(val)}"); e(f"v_mov_b32 v{r+1}, {fbits(val)}")
tiles = [(0,0),(0,1),(1,0),(1,1)]
for (ti, mi) in tiles:
    for s in range(4): mfma1(6, s, ti, mi)
e(f"s_lshl_b32 s{sT0}, s3, 1")
e(f"s_mul_i32 s{sT0}, s{sT0}, 112")
e(f"s_lshl_b32 s{sT1}, s{sFt}, 3")
e(f"s_add_u32 s{sT0}, s{sT0}, s{sT1}")
e(f"s_and_b32 s{sT1}, s{sWave}, 1")
e(f"s_lshl_b32 s{sT1}, s{sT1}, 2")
e(f"s_add_u32 s{sT0}, s{sT0}, s{sT1}")
e(f"s_lshl_b32 s{sHoff}, s{sT0}, 10")
def gelu_tile(ti, mi, pk, side):
    a = acc(ti, mi)
    T = vT[0:16]
    for g in range(2):
        base = a + 8*g
        tt = T[8*(g%2): 8*(g%2)+8]
        for p in range(4): e(f"v_pk_mul_f32 {vr(tt[2*p],2)}, {vr(base+2*p,2)}, {vr(base+2*p,2)}")
        for p in range(4): e(f"v_pk_fma_f32 {vr(tt[2*p],2)}, {vr(tt[2*p],2)}, {vr(C1,2)}, {vr(C0,2)}")
        for p in range(4): e(f"v_pk_mul_f32 {vr(tt[2*p],2)}, {vr(tt[2*p],2)}, {vr(base+2*p,2)}")
        if side: side.pop(0)()
        for p in range(8): e(f"v_exp_f32 v{tt[p]}, v{tt[p]}")
        if side: side.pop(0)()
        for p in range(4): e(f"v_pk_add_f32 {vr(tt[2*p],2)}, {vr(tt[2*p],2)}, {vr(ONE,2)}")
        if side: side.pop(0)()
        for p in range(8): e(f"v_rcp_f32 v{tt[p]}, v{tt[p]}")
        if side: side.pop(0)()
        for p in range(4): e(f"v_pk_mul_f32 {vr(tt[2*p],2)}, {vr(tt[2*p],2)}, {vr(base+2*p,2)}")
        for p in range(4): e(f"v_cvt_pk_bf16_f32 v{pk+4*g+p}, v{tt[2*p]}, v{tt[2*p+1]}")
        voff = vH0 if mi == 0 else vH1
        e(f"buffer_store_dwordx4 {vr(pk+4*g,4)}, v{voff}, {sr(SWS,4)}, s{sHoff} offen offset:{(2*ti+g)*1024} sc1"); VM.issue("hst")
e("s_nop 7")
for k, (ti, mi) in enumerate(tiles):
    gelu_tile(ti, mi, BIAS + 8*k, [])
stamp()
def w2_stage(v):
    wait(vm=f"w2_{v}")
    for f in w2_reads(v): f()
    wait_all_lg()
    if v + 2 < 7:
        for f in w2_dma_ops(v + 2): f()
w2_stage(0)
w2_stage(1)
wait(vm=["hst", "non"])
stamp()
lab("L_nonp")
e(f"v_cmp_ne_u32 vcc, 0, v{vNonP}")
e("s_cbranch_vccnz L_nonp_ok")
e(f"s_lshl_b32 s{sT0}, s3, 2")
e(f"v_mov_b32 v{t0}, 0")
e("s_sleep 2")
e(f"buffer_load_dword v{vNonP}, v{t0}, {sr(SDBG,4)}, s{sT0} offen offset:128 sc1")
e("s_waitcnt vmcnt(0)")
e("s_branch L_nonp")
lab("L_nonp_ok")
e(f"buffer_store_dword v{vNonP}, v{vFlagP}, {sr(SWS,4)}, 0 offen sc1"); VM.issue("flag")
for v in range(2, 7): w2_stage(v)
stamp()
e(f"v_lshrrev_b32 v{t0}, 5, v{vLane}")
e(f"v_lshlrev_b32 v{t0}, 3, v{t0}")
e(f"s_lshr_b32 s{sT0}, s{sWave}, 1")
e(f"s_lshl_b32 s{sT0}, s{sT0}, 6")
e(f"s_lshl_b32 s{sT1}, s{sFtl}, 7")
e(f"s_add_u32 s{sT0}, s{sT0}, s{sT1}")
B2R = vT[16]
for q in range(4):
    e(f"buffer_load_dwordx2 {vr(B2R + 2*q, 2)}, v{t0}, {sr(SB2,4)}, s{sT0} offen offset:{16*q}"); VM.issue("b2")
lab("L_nonc")
e(f"v_cmp_ne_u32 vcc, 0, v{vNonC}")
e("s_cbranch_vccnz L_nonc_ok")
e(f"s_lshl_b32 s{sT0}, s{sM2c}, 2")
e(f"v_mov_b32 v{t1}, 0")
e("s_sleep 2")
e(f"buffer_load_dword v{vNonC}, v{t1}, {sr(SDBG,4)}, s{sT0} offen offset:128 sc1")
e("s_waitcnt vmcnt(0)")
e("s_branch L_nonc")
lab("L_nonc_ok")
e(f"s_mov_b32 s{sT3}, 0")
lab("L_poll")
e(f"buffer_load_dword v{t1}, v{vFlagC}, {sr(SWS,4)}, 0 offen sc1")
e("s_waitcnt vmcnt(0)")
e(f"v_cmp_ne_u32 vcc, v{t1}, v{vNonC}")
e("s_cbranch_vccz L_go")
e(f"s_add_u32 s{sT3}, s{sT3}, 1")
e(f"s_cmp_lt_u32 s{sT3}, 0x40000")
e("s_sleep 1")
e("s_cbranch_scc1 L_poll")
lab("L_go")
VM.drain()
stamp()
HB = 128
e(f"s_lshl_b32 s{sT0}, s{sM2c}, 1")
e(f"s_mul_i32 s{sT0}, s{sT0}, 112")
e(f"s_mul_i32 s{sT1}, s{sWave}, 28")
e(f"s_add_u32 s{sT0}, s{sT0}, s{sT1}")
e(f"s_lshl_b32 s{sHoff}, s{sT0}, 10")
e(f"s_mov_b32 s{sC}, s{sRot}")
def h_ops(v):
    ops = []
    def setup():
        e(f"s_lshl_b32 s{sT2}, s{sC}, 12")
        e(f"s_add_u32 s{sT2}, s{sT2}, s{sHoff}")
        e(f"s_add_u32 s{sC}, s{sC}, 1")
        e(f"s_cmp_ge_u32 s{sC}, 7")
        e(f"s_cselect_b32 s{sC}, 0, s{sC}")
    for s in range(4):
        for mi in range(2):
            def f(s=s, mi=mi):
                if s == 0 and mi == 0: setup()
                r = HB + 32*(v%4) + 8*s + 4*mi
                e(f"buffer_load_dwordx4 {vr(r,4)}, v{vH0 if mi==0 else vH1}, {sr(SWS,4)}, s{sT2} offen offset:{s*1024} sc1"); VM.issue(f"h{v}_{s}")
            ops.append(f)
    return ops
for f in h_ops(0): f()
for f in h_ops(1): f()
for v in range(7):
    extra = h_ops(v + 2) if v + 2 < 7 else []
    for s in range(4):
        wait(vm=f"h{v}_{s}")
        for k, (t, mi) in enumerate([(0,0),(0,1),(1,0),(1,1)]):
            r = HB + 32*(v%4) + 8*s + 4*mi
            c = "0" if (v == 0 and s == 0) else vr(acc(t,mi),16)
            e(f"v_mfma_f32_32x32x16_bf16 {vr(acc(t,mi),16)}, {ar(32*v + 8*s + 4*t, 4)}, {vr(r,4)}, {c}")
            if extra and k % 2 == 1: extra.pop(0)()
stamp()
e("s_nop 15")
RED = 32768
for o in range(4):
    e(f"s_cmp_eq_u32 s{sWave}, {o}")
    e(f"s_cbranch_scc1 L_skipw{o}")
    e(f"s_sub_u32 s{sT0}, s{sWave}, {o+1}")
    e(f"s_and_b32 s{sT0}, s{sT0}, 3")
    e(f"s_lshl_b32 s{sT0}, s{sT0}, 12")
    e(f"s_add_u32 s{sT0}, s{sT0}, {RED}")
    e(f"v_add_u32 v{t0}, s{sT0}, v{vH0}")
    for q in range(4):
        e(f"ds_write_b128 v{t0}, {vr(ACC + 16*o + 4*q, 4)} offset:{o*12288 + q*1024}")
    lab(f"L_skipw{o}")
OWN = 128
for o in range(4):
    e(f"s_cmp_lg_u32 s{sWave}, {o}")
    e(f"s_cbranch_scc1 L_skipm{o}")
    for r in range(16): e(f"v_mov_b32 v{OWN + r}, v{ACC + 16*o + r}")
    lab(f"L_skipm{o}")
e("s_waitcnt lgkmcnt(0)")
e("s_barrier")
e(f"s_mul_i32 s{sT0}, s{sWave}, 12288")
e(f"v_add_u32 v{t0}, s{sT0}, v{vH0}")
RD = 144
for sl in range(3):
    for q in range(4):
        e(f"ds_read_b128 {vr(RD + 16*sl + 4*q, 4)}, v{t0} offset:{RED + sl*4096 + q*1024}")
BB = 192
for q in range(4):
    for d in range(2):
        e(f"v_lshlrev_b32 v{BB + 4*q + 2*d}, 16, v{B2R + 2*q + d}")
        e(f"v_and_b32 v{BB + 4*q + 2*d + 1}, 0xffff0000, v{B2R + 2*q + d}")
for p in range(8): e(f"v_pk_add_f32 {vr(OWN+2*p,2)}, {vr(OWN+2*p,2)}, {vr(BB+2*p,2)}")
e(f"v_and_b32 v{t1}, 31, v{vLane}")
e(f"v_lshrrev_b32 v{t2}, 5, v{vLane}")
e(f"v_mul_u32_u24 v{t1}, 896, v{t1}")
e(f"v_lshl_add_u32 v{t1}, v{t2}, 4, v{t1}")
e(f"s_lshl_b32 s{sT0}, s{sM2c}, 1")
e(f"s_and_b32 s{sT1}, s{sWave}, 1")
e(f"s_add_u32 s{sT0}, s{sT0}, s{sT1}")
e(f"s_mul_i32 s{sT0}, s{sT0}, {32*896}")
e(f"s_lshl_b32 s{sT1}, s{sFtl}, 7")
e(f"s_add_u32 s{sT0}, s{sT0}, s{sT1}")
e(f"s_lshr_b32 s{sT1}, s{sWave}, 1")
e(f"s_lshl_b32 s{sT1}, s{sT1}, 6")
e(f"s_add_u32 s{sT0}, s{sT0}, s{sT1}")
for sl in range(3):
    e(f"s_waitcnt lgkmcnt({8 - 4*sl})")
    for p in range(8): e(f"v_pk_add_f32 {vr(OWN+2*p,2)}, {vr(OWN+2*p,2)}, {vr(RD+16*sl+2*p,2)}")
PK = 208
for p in range(8): e(f"v_cvt_pk_bf16_f32 v{PK+p}, v{OWN+2*p}, v{OWN+2*p+1}")
e("s_nop 1")
for qp in range(2):
    e(f"v_permlane32_swap_b32 v{PK+4*qp}, v{PK+4*qp+2}")
    e(f"v_permlane32_swap_b32 v{PK+4*qp+1}, v{PK+4*qp+3}")
for qp in range(2):
    e(f"buffer_store_dwordx4 {vr(PK+4*qp,4)}, v{t1}, {sr(SOUT,4)}, s{sT0} offen offset:{32*qp}")
if STAMPS:
    e("s_waitcnt vmcnt(0)")
    stamp()
    e("s_memrealtime s[4:5]")
    e("s_waitcnt lgkmcnt(0)")
    e(f"s_lshl_b32 s6, s2, 2")
    e(f"s_add_u32 s6, s6, s{sWave}")
    e(f"s_lshl_b32 s6, s6, 6")
    e(f"s_add_u32 s6, s6, 0x8000000")
    e("v_mov_b32 v4, s100"); e("v_mov_b32 v5, s4")
    for k in range(14):
        if k < nstamp[0]:
            e(f"s_sub_u32 s7, s{72+2*k}, s98"); e(f"v_mov_b32 v{6+k}, s7")
        else: e(f"v_mov_b32 v{6+k}, 0")
    e("v_mov_b32 v20, s6")
    e(f"v_cmp_eq_u32 vcc, 0, v{vLane}")
    e("s_and_saveexec_b64 s[8:9], vcc")
    for k in range(4):
        e(f"buffer_store_dwordx4 v[{4+4*k}:{7+4*k}], v20, {sr(SWS,4)}, 0 offen offset:{16*k}")
    if STAMPS == 2:
        e("v_mov_b32 v21, 0")
        e("v_not_b32 v22, v4")
        e(f"buffer_atomic_umax v5, v21, {sr(SDBG,4)}, 0 offen")
        e(f"buffer_atomic_umax v22, v21, {sr(SDBG,4)}, 0 offen offset:4")
        e(f"buffer_atomic_umax v4, v21, {sr(SDBG,4)}, 0 offen offset:8")
        e(f"s_lshl_b32 s6, s2, 2")
        e(f"s_add_u32 s6, s6, s{sWave}")
        e(f"s_cmp_lg_u32 s6, 401")
        e("s_cbranch_scc1 L_end")
        for k in range(3):
            e(f"buffer_store_dwordx4 v[{6+4*k}:{9+4*k}], v21, {sr(SDBG,4)}, 0 offen offset:{16+16*k}")
lab("L_end")
e("s_endpgm")
kd = f""".section .rodata,"a"
.p2align 6
.amdhsa_kernel {NAME}
  .amdhsa_next_free_vgpr 512
  .amdhsa_next_free_sgpr 102
  .amdhsa_accum_offset 256
  .amdhsa_group_segment_fixed_size 0
  .amdhsa_kernarg_size 64
  .amdhsa_user_sgpr_count 2
  .amdhsa_user_sgpr_kernarg_segment_ptr 1
  .amdhsa_system_sgpr_workgroup_id_x 1
.end_amdhsa_kernel
"""
open(OUT, "w").write(top + "\n".join(L) + "\n" + kd)
```

```python
import sys
STAMPS = int(sys.argv[2]) if len(sys.argv) > 2 else 0
OUT = sys.argv[1] if len(sys.argv) > 1 else "standalone__dense_activation_gelu__prompt.s"
NAME = "standalone__dense_activation_gelu__prompt_kernel"
NWG = 224
FLAGS_OFF = 0x800000
L = []
def e(s): L.append("  " + s)
def lab(s): L.append(s + ":")
def cmt(s): L.append("  ; " + s)

class Ctr:
    def __init__(self, name, maxv): self.q = []; self.name = name; self.maxv = maxv
    def issue(self, tag): self.q.append(tag)
    def need(self, tags):
        if isinstance(tags, str): tags = [tags]
        last = -1
        for i, t in enumerate(self.q):
            if t in tags: last = i
        if last < 0: return None
        n = len(self.q) - 1 - last
        self.q = self.q[last+1:]
        return min(n, self.maxv)
    def drain(self): self.q = []
VM = Ctr("vmcnt", 63); LG = Ctr("lgkmcnt", 15)
def wait(vm=None, lg=None):
    parts = []
    if vm is not None:
        n = VM.need(vm)
        if n is not None: parts.append(f"vmcnt({n})")
    if lg is not None:
        n = LG.need(lg)
        if n is not None: parts.append(f"lgkmcnt({n})")
    if parts: e("s_waitcnt " + " ".join(parts))
def wait_all_lg():
    LG.drain(); e("s_waitcnt lgkmcnt(0)")

nstamp = [0]
def stamp():
    if STAMPS:
        i = nstamp[0]; nstamp[0] += 1
        assert i < 14
        e(f"s_memtime s[{72+2*i}:{73+2*i}]")
SX, SW1, SW2, SWS, SOUT, SB1, SB2, SDBG = 20, 24, 28, 32, 36, 40, 44, 48
sWave, sXcd, sMtl, sFtl, sMt, sFt, sRot, sM2c = 52, 53, 54, 55, 56, 57, 58, 59
sT0, sT1, sT2, sT3 = 60, 61, 62, 63
sXbase, sWbase, sM0x, sM0w, sC = 64, 65, 66, 67, 68
sHoff, sW2base, sStage = 69, 70, 71
vLane = 1
vXo = [2, 3, 4, 5]; vWo = [6, 7, 8, 9]
vAB = [10, 11, 12, 13]; vAB2 = [14, 15, 16, 17]
vAA = [18, 19]; vAA2 = [20, 21]
vW2o = 22; vAW2 = [23, 24]
vH0, vH1 = 25, 26
vFlagP, vFlagC, vNonP, vNonC = 27, 28, 29, 30
vT = list(range(32, 64))
ACC = 64; BIAS = 128; FRAG = 160; RAW = 224
def acc(ti, mi): return ACC + 16 * (2 * ti + mi)
def vr(a, n): return f"v[{a}:{a+n-1}]"
def ar(a, n): return f"a[{a}:{a+n-1}]"
def sr(a, n): return f"s[{a}:{a+n-1}]"

hdr = open("standalone__dense_activation_gelu__prompt.s.ref").read().split("; Override")[0]
top = hdr + f"; Fused MLP: phase 1 h=gelu(x@w1+b1) tiles -> d_ws (write-through), flags, phase 2 out=h@w2+b2.\n; @launch grid=({NWG},1,1) block=(256,1,1) lds=163840\n"
top += f'.amdgcn_target "amdgcn-amd-amdhsa--gfx950"\n.text\n.globl {NAME}\n.p2align 8\n.type {NAME},@function\n{NAME}:\n'

if STAMPS:
    e("s_memrealtime s[100:101]")
    e("s_memtime s[98:99]")
e(f"s_cmp_ge_u32 s2, {NWG}")
e("s_cbranch_scc1 L_end")
e("s_load_dwordx16 s[4:19], s[0:1], 0")
e(f"v_and_b32 v{vLane}, 63, v0")
e(f"v_lshrrev_b32 v{vT[0]}, 6, v0")
e(f"s_and_b32 s{sXcd}, s2, 7")
e(f"v_readfirstlane_b32 s{sWave}, v{vT[0]}")
e(f"s_lshr_b32 s{sT0}, s2, 3")
e(f"s_mul_i32 s{sMtl}, s{sT0}, 37")
e(f"s_lshr_b32 s{sMtl}, s{sMtl}, 8")
e(f"s_mul_i32 s{sT1}, s{sMtl}, 7")
e(f"s_sub_u32 s{sFtl}, s{sT0}, s{sT1}")
e(f"s_lshr_b32 s{sMt}, s{sXcd}, 1")
e(f"s_lshl_b32 s{sMt}, s{sMt}, 2")
e(f"s_add_u32 s{sMt}, s{sMt}, s{sMtl}")
e(f"s_and_b32 s{sFt}, s{sXcd}, 1")
e(f"s_mul_i32 s{sFt}, s{sFt}, 7")
e(f"s_add_u32 s{sFt}, s{sFt}, s{sFtl}")
e(f"s_lshl_b32 s{sM2c}, s{sXcd}, 2")
e(f"s_add_u32 s{sM2c}, s{sM2c}, s{sMtl}")
e(f"s_lshl_b32 s{sRot}, s{sMtl}, 1")
e(f"s_add_u32 s{sRot}, s{sRot}, s{sFtl}")
e(f"s_add_u32 s{sRot}, s{sRot}, s{sXcd}")
e(f"s_mul_i32 s{sT0}, s{sRot}, 37")
e(f"s_lshr_b32 s{sT0}, s{sT0}, 8")
e(f"s_mul_i32 s{sT0}, s{sT0}, 7")
e(f"s_sub_u32 s{sRot}, s{sRot}, s{sT0}")
t0, t1, t2, t3, t4, t5 = vT[0:6]
e(f"v_lshrrev_b32 v{t0}, 3, v{vLane}")
e(f"v_and_b32 v{t1}, 7, v{vLane}")
e(f"v_lshrrev_b32 v{t2}, 1, v{t0}")
e(f"v_xor_b32 v{t3}, v{t1}, v{t2}")
e(f"v_xor_b32 v{t4}, 4, v{t3}")
e(f"v_mul_u32_u24 v{t5}, 896, v{t0}")
e(f"v_lshl_add_u32 v{vXo[0]}, v{t3}, 4, v{t5}")
e(f"v_lshl_add_u32 v{vXo[1]}, v{t4}, 4, v{t5}")
e(f"v_add_u32 v{vXo[1]}, {8*896}, v{vXo[1]}")
e(f"v_add_u32 v{vXo[2]}, {16*896}, v{vXo[0]}")
e(f"v_add_u32 v{vXo[3]}, {16*896}, v{vXo[1]}")
e(f"v_and_b32 v{t2}, 1, v{t2}")
e(f"v_lshlrev_b32 v{t2}, 2, v{t2}")
e(f"v_xor_b32 v{t2}, v{t1}, v{t2}")
e(f"v_lshl_add_u32 v{vW2o}, v{t2}, 4, v{t5}")
e(f"v_lshrrev_b32 v{t0}, 4, v{vLane}")
e(f"v_bfe_u32 v{t1}, v{vLane}, 2, 2")
e(f"v_xor_b32 v{t1}, v{t1}, v{t0}")
e(f"v_and_b32 v{t2}, 3, v{vLane}")
e(f"v_mul_u32_u24 v{t5}, 3584, v{t0}")
e(f"v_lshl_add_u32 v{t5}, v{t1}, 6, v{t5}")
e(f"v_lshl_add_u32 v{vWo[0]}, v{t2}, 4, v{t5}")
for q in range(1, 4):
    e(f"v_add_u32 v{vWo[q]}, {q*4*3584}, v{vWo[0]}")
e(f"s_lshl_b32 s{sT0}, s{sMt}, 2")
e(f"s_add_u32 s{sT0}, s{sT0}, s{sWave}")
e(f"s_mul_i32 s{sXbase}, s{sT0}, 28672")
e(f"s_mul_i32 s{sWbase}, s{sWave}, {16*3584}")
e(f"s_lshl_b32 s{sT0}, s{sFt}, 8")
e(f"s_add_u32 s{sWbase}, s{sWbase}, s{sT0}")
e(f"s_lshl_b32 s{sM0x}, s{sWave}, 12")
e(f"s_add_u32 s{sM0w}, s{sM0x}, 16384")
e(f"s_mov_b32 s{sC}, s{sRot}")
e("s_waitcnt lgkmcnt(0)")
def srd(d, p, n):
    e(f"s_mov_b32 s{d}, s{p}"); e(f"s_mov_b32 s{d+1}, s{p+1}"); e(f"s_mov_b32 s{d+2}, {n}"); e(f"s_mov_b32 s{d+3}, 0x20000")
srd(SX, 4, 1835008); srd(SW1, 6, 1605632)
stamp()

def dma_chunk_ops(i):
    slot = (i % 3) * 32768
    ops = []
    def setup():
        e(f"s_lshl_b32 s{sT2}, s{sC}, 7")
        e(f"s_add_u32 s{sT2}, s{sT2}, s{sXbase}")
        e(f"s_mul_i32 s{sT3}, s{sC}, {64*3584}")
        e(f"s_add_u32 s{sT3}, s{sT3}, s{sWbase}")
        e(f"s_add_u32 s{sC}, s{sC}, 1")
        e(f"s_cmp_ge_u32 s{sC}, 7")
        e(f"s_cselect_b32 s{sC}, 0, s{sC}")
    for q in range(4):
        def fx(q=q):
            if q == 0: setup()
            e(f"s_add_u32 m0, s{sM0x}, {slot + q*1024}")
            e("s_nop 0")
            e(f"buffer_load_dwordx4 v{vXo[q]}, {sr(SX,4)}, s{sT2} offen lds"); VM.issue(f"c{i}")
        def fw(q=q):
            e(f"s_add_u32 m0, s{sM0w}, {slot + q*1024}")
            e("s_nop 0")
            e(f"buffer_load_dwordx4 v{vWo[q]}, {sr(SW1,4)}, s{sT3} offen lds"); VM.issue(f"c{i}")
        ops += [fx, fw]
    return ops

for f in dma_chunk_ops(0): f()
srd(SB1, 8, 3584); srd(SWS, 18, 0x10000000); srd(SDBG, 16, 256)
e(f"v_lshrrev_b32 v{t0}, 5, v{vLane}")
e(f"v_lshlrev_b32 v{t0}, 3, v{t0}")
e(f"s_and_b32 s{sT0}, s{sWave}, 1")
e(f"s_lshl_b32 s{sT0}, s{sT0}, 7")
e(f"s_lshl_b32 s{sT1}, s{sFt}, 8")
e(f"s_add_u32 s{sT0}, s{sT0}, s{sT1}")
for ti in range(2):
    for q in range(4):
        e(f"buffer_load_dwordx2 {vr(RAW + 8*ti + 2*q, 2)}, v{t0}, {sr(SB1,4)}, s{sT0} offen offset:{64*ti + 16*q}"); VM.issue("b1")
e(f"v_and_b32 v{t1}, 31, v{vLane}")
e(f"v_lshrrev_b32 v{t2}, 3, v{t1}")
e(f"v_and_b32 v{t3}, 7, v{t1}")
e(f"v_lshlrev_b32 v{t2}, 7, v{t2}")
e(f"v_lshl_add_u32 v{t2}, v{t3}, 2, v{t2}")
e(f"s_lshl_b32 s{sT1}, s{sM2c}, 9")
e(f"s_add_u32 s{sT1}, s{sT1}, {FLAGS_OFF}")
vOld = vT[8]
e(f"buffer_load_dword v{vOld}, v{t2}, {sr(SWS,4)}, s{sT1} offen sc1"); VM.issue("old")
for f in dma_chunk_ops(1): f()
for f in dma_chunk_ops(2): f()
srd(SW2, 10, 1605632); srd(SOUT, 14, 1835008); srd(SB2, 12, 896)
e(f"v_and_b32 v{t0}, 31, v{vLane}")
e(f"v_lshrrev_b32 v{t1}, 5, v{vLane}")
e(f"v_bfe_u32 v{t2}, v{vLane}, 1, 3")
e(f"v_xor_b32 v{t2}, v{t2}, v{t1}")
e(f"s_lshr_b32 s{sT0}, s{sWave}, 1")
e(f"s_lshl_b32 s{sT0}, s{sT0}, 13")
e(f"v_lshlrev_b32 v{t0}, 7, v{t0}")
e(f"v_add_u32 v{t0}, s{sT0}, v{t0}")
for s in range(4):
    e(f"v_xor_b32 v{t3}, {2*s}, v{t2}")
    e(f"v_lshl_add_u32 v{vAB[s]}, v{t3}, 4, v{t0}")
    e(f"v_add_u32 v{vAB2[s]}, 65536, v{vAB[s]}")
e(f"v_bfe_u32 v{t0}, v{vLane}, 2, 2")
e(f"v_and_b32 v{t2}, 3, v{vLane}")
e(f"v_bfe_u32 v{t3}, v{vLane}, 4, 1")
e(f"v_lshlrev_b32 v{t2}, 3, v{t2}")
e(f"v_lshl_add_u32 v{t2}, v{t3}, 5, v{t2}")
e(f"v_lshl_add_u32 v{t3}, v{t1}, 3, v{t0}")
e(f"v_lshl_add_u32 v{t3}, v{t3}, 8, v{t2}")
e(f"v_add_u32 v{t3}, 16384, v{t3}")
e(f"s_and_b32 s{sT0}, s{sWave}, 1")
e(f"s_lshl_b32 s{sT0}, s{sT0}, 1")
for ti in range(2):
    e(f"s_add_u32 s{sT1}, s{sT0}, {ti}")
    e(f"v_xor_b32 v{t4}, s{sT1}, v{t0}")
    e(f"v_lshl_add_u32 v{vAA[ti]}, v{t4}, 6, v{t3}")
    e(f"v_add_u32 v{vAA2[ti]}, 65536, v{vAA[ti]}")
e(f"s_lshl_b32 s{sStage}, s{sWave}, 14")
e(f"s_add_u32 s{sStage}, s{sStage}, 98304")
e(f"v_lshl_add_u32 v{t3}, v{t1}, 2, v{t0}")
e(f"v_lshl_add_u32 v{t3}, v{t3}, 7, v{t2}")
e(f"v_add_u32 v{t3}, s{sStage}, v{t3}")
e(f"v_lshrrev_b32 v{t4}, 1, v{t0}")
e(f"v_lshl_add_u32 v{vAW2[0]}, v{t4}, 6, v{t3}")
e(f"v_xor_b32 v{t4}, 1, v{t4}")
e(f"v_lshl_add_u32 v{vAW2[1]}, v{t4}, 6, v{t3}")
e(f"v_lshlrev_b32 v{vH0}, 4, v{vLane}")
e(f"v_add_u32 v{vH1}, 114688, v{vH0}")
e(f"s_mul_i32 s{sW2base}, s{sWave}, {448*896}")
e(f"s_lshl_b32 s{sT0}, s{sFtl}, 7")
e(f"s_add_u32 s{sW2base}, s{sW2base}, s{sT0}")
e(f"v_and_b32 v{t0}, 7, v{vLane}")
e(f"v_min_u32 v{t0}, 6, v{t0}")
e(f"s_lshl_b32 s{sT0}, s{sM2c}, 2")
e(f"s_add_u32 s{sT0}, s{sT0}, s{sWave}")
e(f"s_lshl_b32 s{sT0}, s{sT0}, 7")
e(f"s_add_u32 s{sT0}, s{sT0}, {FLAGS_OFF}")
e(f"v_lshlrev_b32 v{t0}, 2, v{t0}")
e(f"v_add_u32 v{vFlagC}, s{sT0}, v{t0}")
e(f"s_lshr_b32 s{sT0}, s{sWave}, 1")
e(f"s_lshl_b32 s{sT1}, s{sMt}, 1")
e(f"s_add_u32 s{sT0}, s{sT0}, s{sT1}")
e(f"s_mov_b32 s3, s{sT0}")
e(f"s_and_b32 s{sT1}, s{sWave}, 1")
e(f"s_lshl_b32 s{sT2}, s{sFt}, 1")
e(f"s_add_u32 s{sT1}, s{sT1}, s{sT2}")
e(f"s_mul_i32 s{sT2}, s{sT1}, 37")
e(f"s_lshr_b32 s{sT2}, s{sT2}, 8")
e(f"s_mul_i32 s{sT3}, s{sT2}, 7")
e(f"s_sub_u32 s{sT1}, s{sT1}, s{sT3}")
e(f"s_lshl_b32 s{sT0}, s{sT0}, 2")
e(f"s_add_u32 s{sT0}, s{sT0}, s{sT2}")
e(f"s_lshl_b32 s{sT0}, s{sT0}, 7")
e(f"s_lshl_b32 s{sT1}, s{sT1}, 2")
e(f"s_add_u32 s{sT0}, s{sT0}, s{sT1}")
e(f"s_add_u32 s{sT0}, s{sT0}, {FLAGS_OFF}")
e(f"v_mov_b32 v{vFlagP}, s{sT0}")

wait(vm=["c0", "b1", "old"])
stamp()
for ti in range(2):
    for q in range(4):
        for d in range(2):
            src = RAW + 8*ti + 2*q + d
            e(f"v_lshlrev_b32 v{BIAS + 16*ti + 4*q + 2*d}, 16, v{src}")
            e(f"v_and_b32 v{BIAS + 16*ti + 4*q + 2*d + 1}, 0xffff0000, v{src}")
e(f"s_or_b32 s{sT0}, s{sFtl}, s{sWave}")
e(f"s_cmp_lg_u32 s{sT0}, 0")
e("s_cbranch_scc1 L_noleader")
e(f"v_and_b32 v{t1}, 31, v{vLane}")
e(f"v_lshrrev_b32 v{t2}, v{t1}, v{vOld}")
e(f"v_and_b32 v{t2}, 1, v{t2}")
e(f"v_cmp_eq_u32 vcc, 0, v{t2}")
e("s_nop 4")
e(f"s_or_b32 s{sT0}, vcc_lo, 0x80808080")
e(f"s_lshl_b32 s{sT1}, s{sM2c}, 2")
e(f"v_mov_b32 v{t2}, s{sT0}")
e(f"v_mov_b32 v{t3}, s{sT1}")
e(f"buffer_store_dword v{t2}, v{t3}, {sr(SDBG,4)}, 0 offen offset:128 sc1")
lab("L_noleader")
e("s_barrier")

def reads(i, s):
    slot = i % 3
    fb = FRAG + 16 * s
    aA = vAA if slot < 2 else vAA2
    aB = vAB if slot < 2 else vAB2
    so = (slot % 2) * 32768
    for ti in range(2):
        for e2 in range(2):
            e(f"ds_read_b64_tr_b16 {vr(fb + 4*ti + 2*e2, 2)}, v{aA[ti]} offset:{so + s*4096 + e2*1024}"); LG.issue(f"r{i}_{s}")
    for mi in range(2):
        e(f"ds_read_b128 {vr(fb + 8 + 4*mi, 4)}, v{aB[s]} offset:{so + mi*4096}"); LG.issue(f"r{i}_{s}")
def mfma1(i, s, ti, mi):
    fb = FRAG + 16 * s
    c = vr(BIAS + 16*ti, 16) if (i == 0 and s == 0) else vr(acc(ti, mi), 16)
    e(f"v_mfma_f32_32x32x16_bf16 {vr(acc(ti,mi),16)}, {vr(fb+4*ti,4)}, {vr(fb+8+4*mi,4)}, {c}")
def mfma_step(i, s, extra):
    for k, (ti, mi) in enumerate([(0,0),(0,1),(1,0),(1,1)]):
        mfma1(i, s, ti, mi)
        if extra and k % 2 == 1 or (extra and len(extra) > 8):
            extra.pop(0)()

def w2_dma_ops(v):
    ops = []
    def setup():
        e(f"s_mul_i32 s{sT2}, s{sC}, {64*896}")
        e(f"s_add_u32 s{sT2}, s{sT2}, s{sW2base}")
        e(f"s_add_u32 s{sC}, s{sC}, 1")
        e(f"s_cmp_ge_u32 s{sC}, 7")
        e(f"s_cselect_b32 s{sC}, 0, s{sC}")
    for q in range(8):
        def f(q=q):
            if q == 0: setup()
            e(f"s_add_u32 m0, s{sStage}, {(v&1)*8192 + q*1024}")
            if q: e(f"s_add_u32 s{sT2}, s{sT2}, {8*896}")
            else: e("s_nop 0")
            e(f"buffer_load_dwordx4 v{vW2o}, {sr(SW2,4)}, s{sT2} offen lds"); VM.issue(f"w2_{v}")
        ops.append(f)
    return ops
def w2_reads(v):
    ops = []
    for s in range(4):
        for t in range(2):
            for e2 in range(2):
                def f(s=s, t=t, e2=e2):
                    e(f"ds_read_b64_tr_b16 {ar(32*v + 8*s + 4*t + 2*e2, 2)}, v{vAW2[t]} offset:{(v&1)*8192 + s*2048 + e2*1024}"); LG.issue(f"w2r{v}")
                ops.append(f)
    return ops

reads(0, 0); reads(0, 1)
for i in range(6):
    extra = []
    if 1 <= i <= 4: extra = dma_chunk_ops(i + 2)
    if i == 5: extra = w2_dma_ops(0)
    reads(i, 2)
    wait(lg=f"r{i}_0")
    mfma_step(i, 0, extra)
    reads(i, 3)
    wait(lg=f"r{i}_1")
    mfma_step(i, 1, extra)
    wait(lg=f"r{i}_2")
    mfma_step(i, 2, extra)
    while extra: extra.pop(0)()
    if i == 4:
        e(f"s_lshl_b32 s{sT0}, s3, 2")
        e(f"s_lshl_b32 s{sT1}, s{sM2c}, 2")
        e(f"v_mov_b32 v{t0}, 0")
        e(f"buffer_load_dword v{vNonP}, v{t0}, {sr(SDBG,4)}, s{sT0} offen offset:128 sc1"); VM.issue("non")
        e(f"buffer_load_dword v{vNonC}, v{t0}, {sr(SDBG,4)}, s{sT1} offen offset:128 sc1"); VM.issue("non")
    wait(vm=f"c{i+1}", lg=f"r{i}_3")
    e("s_barrier")
    reads(i + 1, 0); reads(i + 1, 1)
    mfma_step(i, 3, [])
i = 6
stamp_later = True
reads(6, 2); reads(6, 3)
for f in w2_dma_ops(1): f()
wait_all_lg()
stamp()
wait_all_lg()
C0, C1, ONE = vT[24], vT[26], vT[28]
import struct
def fbits(x): return "0x%08x" % struct.unpack("<I", struct.pack("<f", x))[0]
c0 = -2.0 * 0.7978845608028654 * 1.4426950408889634
c1 = c0 * 0.044715
for r, val in ((C0, c0), (C1, c1), (ONE, 1.0)):
    e(f"v_mov_b32 v{r}, {fbits(val)}"); e(f"v_mov_b32 v{r+1}, {fbits(val)}")
tiles = [(0,0),(0,1),(1,0),(1,1)]
for (ti, mi) in tiles:
    for s in range(4): mfma1(6, s, ti, mi)
e(f"s_lshl_b32 s{sT0}, s3, 1")
e(f"s_mul_i32 s{sT0}, s{sT0}, 112")
e(f"s_lshl_b32 s{sT1}, s{sFt}, 3")
e(f"s_add_u32 s{sT0}, s{sT0}, s{sT1}")
e(f"s_and_b32 s{sT1}, s{sWave}, 1")
e(f"s_lshl_b32 s{sT1}, s{sT1}, 2")
e(f"s_add_u32 s{sT0}, s{sT0}, s{sT1}")
e(f"s_lshl_b32 s{sHoff}, s{sT0}, 10")
def gelu_tile(ti, mi, pk, side):
    a = acc(ti, mi)
    T = vT[0:16]
    for g in range(2):
        base = a + 8*g
        tt = T[8*(g%2): 8*(g%2)+8]
        for p in range(4): e(f"v_pk_mul_f32 {vr(tt[2*p],2)}, {vr(base+2*p,2)}, {vr(base+2*p,2)}")
        for p in range(4): e(f"v_pk_fma_f32 {vr(tt[2*p],2)}, {vr(tt[2*p],2)}, {vr(C1,2)}, {vr(C0,2)}")
        for p in range(4): e(f"v_pk_mul_f32 {vr(tt[2*p],2)}, {vr(tt[2*p],2)}, {vr(base+2*p,2)}")
        if side: side.pop(0)()
        for p in range(8): e(f"v_exp_f32 v{tt[p]}, v{tt[p]}")
        if side: side.pop(0)()
        for p in range(4): e(f"v_pk_add_f32 {vr(tt[2*p],2)}, {vr(tt[2*p],2)}, {vr(ONE,2)}")
        if side: side.pop(0)()
        for p in range(8): e(f"v_rcp_f32 v{tt[p]}, v{tt[p]}")
        if side: side.pop(0)()
        for p in range(4): e(f"v_pk_mul_f32 {vr(tt[2*p],2)}, {vr(tt[2*p],2)}, {vr(base+2*p,2)}")
        for p in range(4): e(f"v_cvt_pk_bf16_f32 v{pk+4*g+p}, v{tt[2*p]}, v{tt[2*p+1]}")
        voff = vH0 if mi == 0 else vH1
        e(f"buffer_store_dwordx4 {vr(pk+4*g,4)}, v{voff}, {sr(SWS,4)}, s{sHoff} offen offset:{(2*ti+g)*1024} sc1"); VM.issue("hst")
e("s_nop 7")
for k, (ti, mi) in enumerate(tiles):
    gelu_tile(ti, mi, BIAS + 8*k, [])
stamp()
def w2_stage(v):
    wait(vm=f"w2_{v}")
    for f in w2_reads(v): f()
    wait_all_lg()
    if v + 2 < 7:
        for f in w2_dma_ops(v + 2): f()
w2_stage(0)
w2_stage(1)
wait(vm=["hst", "non"])
stamp()
lab("L_nonp")
e(f"v_cmp_ne_u32 vcc, 0, v{vNonP}")
e("s_cbranch_vccnz L_nonp_ok")
e(f"s_lshl_b32 s{sT0}, s3, 2")
e(f"v_mov_b32 v{t0}, 0")
e("s_sleep 2")
e(f"buffer_load_dword v{vNonP}, v{t0}, {sr(SDBG,4)}, s{sT0} offen offset:128 sc1")
e("s_waitcnt vmcnt(0)")
e("s_branch L_nonp")
lab("L_nonp_ok")
e(f"buffer_store_dword v{vNonP}, v{vFlagP}, {sr(SWS,4)}, 0 offen sc1"); VM.issue("flag")
for v in range(2, 7): w2_stage(v)
stamp()
e(f"v_lshrrev_b32 v{t0}, 5, v{vLane}")
e(f"v_lshlrev_b32 v{t0}, 3, v{t0}")
e(f"s_lshr_b32 s{sT0}, s{sWave}, 1")
e(f"s_lshl_b32 s{sT0}, s{sT0}, 6")
e(f"s_lshl_b32 s{sT1}, s{sFtl}, 7")
e(f"s_add_u32 s{sT0}, s{sT0}, s{sT1}")
B2R = vT[16]
for q in range(4):
    e(f"buffer_load_dwordx2 {vr(B2R + 2*q, 2)}, v{t0}, {sr(SB2,4)}, s{sT0} offen offset:{16*q}"); VM.issue("b2")
lab("L_nonc")
e(f"v_cmp_ne_u32 vcc, 0, v{vNonC}")
e("s_cbranch_vccnz L_nonc_ok")
e(f"s_lshl_b32 s{sT0}, s{sM2c}, 2")
e(f"v_mov_b32 v{t1}, 0")
e("s_sleep 2")
e(f"buffer_load_dword v{vNonC}, v{t1}, {sr(SDBG,4)}, s{sT0} offen offset:128 sc1")
e("s_waitcnt vmcnt(0)")
e("s_branch L_nonc")
lab("L_nonc_ok")
e(f"s_mov_b32 s{sT3}, 0")
lab("L_poll")
e(f"buffer_load_dword v{t1}, v{vFlagC}, {sr(SWS,4)}, 0 offen sc1")
e("s_waitcnt vmcnt(0)")
e(f"v_cmp_ne_u32 vcc, v{t1}, v{vNonC}")
e("s_cbranch_vccz L_go")
e(f"s_add_u32 s{sT3}, s{sT3}, 1")
e(f"s_cmp_lt_u32 s{sT3}, 0x40000")
e("s_sleep 1")
e("s_cbranch_scc1 L_poll")
lab("L_go")
VM.drain()
stamp()
HB = 128
e(f"s_lshl_b32 s{sT0}, s{sM2c}, 1")
e(f"s_mul_i32 s{sT0}, s{sT0}, 112")
e(f"s_mul_i32 s{sT1}, s{sWave}, 28")
e(f"s_add_u32 s{sT0}, s{sT0}, s{sT1}")
e(f"s_lshl_b32 s{sHoff}, s{sT0}, 10")
e(f"s_mov_b32 s{sC}, s{sRot}")
def h_ops(v):
    ops = []
    def setup():
        e(f"s_lshl_b32 s{sT2}, s{sC}, 12")
        e(f"s_add_u32 s{sT2}, s{sT2}, s{sHoff}")
        e(f"s_add_u32 s{sC}, s{sC}, 1")
        e(f"s_cmp_ge_u32 s{sC}, 7")
        e(f"s_cselect_b32 s{sC}, 0, s{sC}")
    for s in range(4):
        for mi in range(2):
            def f(s=s, mi=mi):
                if s == 0 and mi == 0: setup()
                r = HB + 32*(v%4) + 8*s + 4*mi
                e(f"buffer_load_dwordx4 {vr(r,4)}, v{vH0 if mi==0 else vH1}, {sr(SWS,4)}, s{sT2} offen offset:{s*1024} sc1"); VM.issue(f"h{v}_{s}")
            ops.append(f)
    return ops
for f in h_ops(0): f()
for f in h_ops(1): f()
for v in range(7):
    extra = h_ops(v + 2) if v + 2 < 7 else []
    for s in range(4):
        wait(vm=f"h{v}_{s}")
        for k, (t, mi) in enumerate([(0,0),(0,1),(1,0),(1,1)]):
            r = HB + 32*(v%4) + 8*s + 4*mi
            c = "0" if (v == 0 and s == 0) else vr(acc(t,mi),16)
            e(f"v_mfma_f32_32x32x16_bf16 {vr(acc(t,mi),16)}, {ar(32*v + 8*s + 4*t, 4)}, {vr(r,4)}, {c}")
            if extra and k % 2 == 1: extra.pop(0)()
stamp()
e("s_nop 15")
RED = 32768
for o in range(4):
    e(f"s_cmp_eq_u32 s{sWave}, {o}")
    e(f"s_cbranch_scc1 L_skipw{o}")
    e(f"s_sub_u32 s{sT0}, s{sWave}, {o+1}")
    e(f"s_and_b32 s{sT0}, s{sT0}, 3")
    e(f"s_lshl_b32 s{sT0}, s{sT0}, 12")
    e(f"s_add_u32 s{sT0}, s{sT0}, {RED}")
    e(f"v_add_u32 v{t0}, s{sT0}, v{vH0}")
    for q in range(4):
        e(f"ds_write_b128 v{t0}, {vr(ACC + 16*o + 4*q, 4)} offset:{o*12288 + q*1024}")
    lab(f"L_skipw{o}")
OWN = 128
for o in range(4):
    e(f"s_cmp_lg_u32 s{sWave}, {o}")
    e(f"s_cbranch_scc1 L_skipm{o}")
    for r in range(16): e(f"v_mov_b32 v{OWN + r}, v{ACC + 16*o + r}")
    lab(f"L_skipm{o}")
e("s_waitcnt lgkmcnt(0)")
e("s_barrier")
e(f"s_mul_i32 s{sT0}, s{sWave}, 12288")
e(f"v_add_u32 v{t0}, s{sT0}, v{vH0}")
RD = 144
for sl in range(3):
    for q in range(4):
        e(f"ds_read_b128 {vr(RD + 16*sl + 4*q, 4)}, v{t0} offset:{RED + sl*4096 + q*1024}")
BB = 192
for q in range(4):
    for d in range(2):
        e(f"v_lshlrev_b32 v{BB + 4*q + 2*d}, 16, v{B2R + 2*q + d}")
        e(f"v_and_b32 v{BB + 4*q + 2*d + 1}, 0xffff0000, v{B2R + 2*q + d}")
for p in range(8): e(f"v_pk_add_f32 {vr(OWN+2*p,2)}, {vr(OWN+2*p,2)}, {vr(BB+2*p,2)}")
e(f"v_and_b32 v{t1}, 31, v{vLane}")
e(f"v_lshrrev_b32 v{t2}, 5, v{vLane}")
e(f"v_mul_u32_u24 v{t1}, 896, v{t1}")
e(f"v_lshl_add_u32 v{t1}, v{t2}, 4, v{t1}")
e(f"s_lshl_b32 s{sT0}, s{sM2c}, 1")
e(f"s_and_b32 s{sT1}, s{sWave}, 1")
e(f"s_add_u32 s{sT0}, s{sT0}, s{sT1}")
e(f"s_mul_i32 s{sT0}, s{sT0}, {32*896}")
e(f"s_lshl_b32 s{sT1}, s{sFtl}, 7")
e(f"s_add_u32 s{sT0}, s{sT0}, s{sT1}")
e(f"s_lshr_b32 s{sT1}, s{sWave}, 1")
e(f"s_lshl_b32 s{sT1}, s{sT1}, 6")
e(f"s_add_u32 s{sT0}, s{sT0}, s{sT1}")
for sl in range(3):
    e(f"s_waitcnt lgkmcnt({8 - 4*sl})")
    for p in range(8): e(f"v_pk_add_f32 {vr(OWN+2*p,2)}, {vr(OWN+2*p,2)}, {vr(RD+16*sl+2*p,2)}")
PK = 208
for p in range(8): e(f"v_cvt_pk_bf16_f32 v{PK+p}, v{OWN+2*p}, v{OWN+2*p+1}")
e("s_nop 1")
for qp in range(2):
    e(f"v_permlane32_swap_b32 v{PK+4*qp}, v{PK+4*qp+2}")
    e(f"v_permlane32_swap_b32 v{PK+4*qp+1}, v{PK+4*qp+3}")
for qp in range(2):
    e(f"buffer_store_dwordx4 {vr(PK+4*qp,4)}, v{t1}, {sr(SOUT,4)}, s{sT0} offen offset:{32*qp}")
if STAMPS:
    e("s_waitcnt vmcnt(0)")
    stamp()
    e("s_memrealtime s[4:5]")
    e("s_waitcnt lgkmcnt(0)")
    e(f"s_lshl_b32 s6, s2, 2")
    e(f"s_add_u32 s6, s6, s{sWave}")
    e(f"s_lshl_b32 s6, s6, 6")
    e(f"s_add_u32 s6, s6, 0x8000000")
    e("v_mov_b32 v4, s100"); e("v_mov_b32 v5, s4")
    for k in range(14):
        if k < nstamp[0]:
            e(f"s_sub_u32 s7, s{72+2*k}, s98"); e(f"v_mov_b32 v{6+k}, s7")
        else: e(f"v_mov_b32 v{6+k}, 0")
    e("v_mov_b32 v20, s6")
    e(f"v_cmp_eq_u32 vcc, 0, v{vLane}")
    e("s_and_saveexec_b64 s[8:9], vcc")
    for k in range(4):
        e(f"buffer_store_dwordx4 v[{4+4*k}:{7+4*k}], v20, {sr(SWS,4)}, 0 offen offset:{16*k}")
    if STAMPS == 2:
        e("v_mov_b32 v21, 0")
        e(f"s_lshl_b32 s6, s2, 2")
        e(f"s_add_u32 s6, s6, s{sWave}")
        e(f"s_cmp_lg_u32 s6, 0")
        e("s_cbranch_scc1 L_d1")
        e(f"buffer_store_dwordx2 v[4:5], v21, {sr(SDBG,4)}, 0 offen offset:48")
        lab("L_d1")
        e(f"s_cmp_lg_u32 s6, 893")
        e("s_cbranch_scc1 L_d2")
        e(f"buffer_store_dwordx2 v[4:5], v21, {sr(SDBG,4)}, 0 offen offset:56")
        lab("L_d2")
        e(f"s_cmp_lg_u32 s6, 401")
        e("s_cbranch_scc1 L_end")
        for k in range(3):
            e(f"buffer_store_dwordx4 v[{4+4*k}:{7+4*k}], v21, {sr(SDBG,4)}, 0 offen offset:{16*k}")
lab("L_end")
e("s_endpgm")
kd = f""".section .rodata,"a"
.p2align 6
.amdhsa_kernel {NAME}
  .amdhsa_next_free_vgpr 512
  .amdhsa_next_free_sgpr 102
  .amdhsa_accum_offset 256
  .amdhsa_group_segment_fixed_size 0
  .amdhsa_kernarg_size 64
  .amdhsa_user_sgpr_count 2
  .amdhsa_user_sgpr_kernarg_segment_ptr 1
  .amdhsa_system_sgpr_workgroup_id_x 1
.end_amdhsa_kernel
"""
open(OUT, "w").write(top + "\n".join(L) + "\n" + kd)
```

```python
import sys, struct
OUT = sys.argv[1] if len(sys.argv) > 1 else "standalone__dense_activation_gelu__prompt.s"
STAMPS = int(sys.argv[2]) if len(sys.argv) > 2 else 0
OPT = dict(a.split("=") for a in sys.argv[3:])
def opt(k, d): return int(OPT.get(k, d))
NAME = "standalone__dense_activation_gelu__prompt_kernel"
NWG = 224
PF = opt("pf", 1)
GRID = 256 if PF else 224
FLAGS_OFF = 0x800000
L = []
def e(s): L.append("  " + s)
def lab(s): L.append(s + ":")

class Ctr:
    def __init__(self, maxv): self.q = []; self.maxv = maxv
    def issue(self, tag): self.q.append(tag)
    def need(self, tags):
        if isinstance(tags, str): tags = [tags]
        last = -1
        for i, t in enumerate(self.q):
            if t in tags: last = i
        if last < 0: return None
        n = len(self.q) - 1 - last
        self.q = self.q[last+1:]
        return min(n, self.maxv)
    def drain(self): self.q = []
VM = Ctr(63); LG = Ctr(15)
def wait(vm=None, lg=None):
    parts = []
    if vm is not None:
        n = VM.need(vm)
        if n is not None: parts.append(f"vmcnt({n})")
    if lg is not None:
        n = LG.need(lg)
        if n is not None: parts.append(f"lgkmcnt({n})")
    if parts: e("s_waitcnt " + " ".join(parts))
nstamp = [0]
def stamp():
    if STAMPS:
        i = nstamp[0]; nstamp[0] += 1
        assert i < 12
        e(f"s_memtime s[{74+2*i}:{75+2*i}]")

SX, SW1, SW2, SWS, SOUT, SB1, SB2, SDBG = 20, 24, 28, 32, 36, 40, 44, 48
sWave, sXcd, sMtl, sFtl, sMt, sFt, sRot, sM2c = 52, 53, 54, 55, 56, 57, 58, 59
sT0, sT1, sT2, sT3 = 60, 61, 62, 63
sXbase, sWbase, sM0x, sM0w, sC = 64, 65, 66, 67, 68
sHoff, sW2base, sStage = 69, 70, 71
sAmask = 72
sM2p = 3
sBlk = [4, 5, 6, 7, 8, 9, 10]
vLane = 1
vXo = [2, 3]
vWo = 4
vW2o = 5
vW2q = [5, 60, 61, 62]
vAB = [6, 7, 8, 9]; vAB2 = [10, 11, 12, 13]
vAA = [14, 15]; vAA2 = [16, 17]; vAA3 = [18, 19]
vAW2 = [20, 21]; vAW2b = [22, 23]; vAW2c = [63, 37]
vH0 = 24
vG0, vG1 = 25, 26
vFlagP = [27, 28]; vFlagC = 29
vNonP = 30; vNonC = 32
vNonS = 31
vOld, vZero = 34, 35
vT = list(range(38, 60))
ACC = 64; BIAS = 128; FRAG = 192; PK = 224; RAW = 224
XF = 128
SLOT = 24576; W1B = 98304; BIASL = 155648
def acc(k): return ACC + 16 * k
def vr(a, n): return f"v[{a}:{a+n-1}]"
def ar(a, n): return f"a[{a}:{a+n-1}]"
def sr(a, n): return f"s[{a}:{a+n-1}]"
def fbits(x): return "0x%08x" % struct.unpack("<I", struct.pack("<f", x))[0]
t0, t1, t2, t3, t4, t5 = vT[0:6]

hdr = open("standalone__dense_activation_gelu__prompt.s.ref").read().split("; Override")[0]
top = hdr + f"; Fused MLP: phase 1 h=gelu(x@w1+b1) tiles -> d_ws (write-through) + flags, phase 2 out=h@w2+b2.\n; @launch grid=({GRID},1,1) block=(256,1,1) lds=163840\n"
top += f'.amdgcn_target "amdgcn-amd-amdhsa--gfx950"\n.text\n.globl {NAME}\n.p2align 8\n.type {NAME},@function\n{NAME}:\n'

if STAMPS:
    e("s_memrealtime s[100:101]")
    e("s_memtime s[98:99]")
e(f"s_cmp_ge_u32 s2, {NWG}")
e("s_cbranch_scc1 L_spare")
e("s_load_dwordx16 s[4:19], s[0:1], 0")
e(f"v_and_b32 v{vLane}, 63, v0")
e(f"v_lshrrev_b32 v{t0}, 6, v0")
e(f"s_and_b32 s{sXcd}, s2, 7")
e(f"v_readfirstlane_b32 s{sWave}, v{t0}")
e("s_nop 3")
if opt("cpf", 1):
    NL = opt("cpfn", 4)
    e(f"s_cmp_lg_u32 s{sWave}, 1")
    e("s_cbranch_scc1 L_nocpf")
    e(f"s_getpc_b64 s[{sT0}:{sT1}]")
    lab("L_pc")
    e(f"s_lshr_b32 s{sT2}, s2, 3")
    e(f"s_mul_i32 s{sT2}, s{sT2}, {NL}")
    e(f"v_min_u32 v{t4}, {NL-1}, v{vLane}")
    e(f"v_add_lshl_u32 v{t4}, v{t4}, s{sT2}, 7")
    e(f"v_min_u32 v{t4}, L_end-L_pc, v{t4}")
    e(f"global_load_dword v37, v{t4}, s[{sT0}:{sT1}]")
    lab("L_nocpf")
e(f"s_lshr_b32 s{sT0}, s2, 3")
e(f"s_mul_i32 s{sMtl}, s{sT0}, 37")
e(f"s_lshr_b32 s{sMtl}, s{sMtl}, 8")
e(f"s_mul_i32 s{sT1}, s{sMtl}, 7")
e(f"s_sub_u32 s{sFtl}, s{sT0}, s{sT1}")
e(f"s_lshr_b32 s{sMt}, s{sXcd}, 1")
e(f"s_lshl_b32 s{sMt}, s{sMt}, 2")
e(f"s_add_u32 s{sMt}, s{sMt}, s{sMtl}")
e(f"s_and_b32 s{sFt}, s{sXcd}, 1")
e(f"s_mul_i32 s{sFt}, s{sFt}, 7")
e(f"s_add_u32 s{sFt}, s{sFt}, s{sFtl}")
e(f"s_lshl_b32 s{sM2c}, s{sXcd}, 2")
e(f"s_add_u32 s{sM2c}, s{sM2c}, s{sMtl}")
e(f"s_lshl_b32 s{sRot}, s{sMtl}, 1")
e(f"s_add_u32 s{sRot}, s{sRot}, s{sFtl}")
e(f"s_add_u32 s{sRot}, s{sRot}, s{sXcd}")
e(f"s_mul_i32 s{sT0}, s{sRot}, 37")
e(f"s_lshr_b32 s{sT0}, s{sT0}, 8")
e(f"s_mul_i32 s{sT0}, s{sT0}, 7")
e(f"s_sub_u32 s{sRot}, s{sRot}, s{sT0}")
e(f"v_lshrrev_b32 v{t0}, 3, v{vLane}")
e(f"v_and_b32 v{t1}, 7, v{vLane}")
e(f"v_lshrrev_b32 v{t2}, 1, v{t0}")
e(f"v_xor_b32 v{t3}, v{t1}, v{t2}")
e(f"v_xor_b32 v{t4}, 4, v{t3}")
e(f"v_mul_u32_u24 v{t5}, 896, v{t0}")
e(f"v_lshl_add_u32 v{vXo[0]}, v{t3}, 4, v{t5}")
e(f"v_lshl_add_u32 v{vXo[1]}, v{t4}, 4, v{t5}")
e(f"v_add_u32 v{vXo[1]}, {8*896}, v{vXo[1]}")
e(f"v_and_b32 v{t2}, 1, v{t2}")
e(f"v_lshlrev_b32 v{t2}, 2, v{t2}")
e(f"v_xor_b32 v{t2}, v{t1}, v{t2}")
e(f"v_lshl_add_u32 v{vW2o}, v{t2}, 4, v{t5}")
for q in range(1, 4): e(f"v_add_u32 v{vW2q[q]}, {q*(7168-1024)}, v{vW2o}")
e(f"v_mul_u32_u24 v{t5}, 3584, v{t0}")
e(f"v_lshl_add_u32 v{vWo}, v{t2}, 4, v{t5}")
e(f"s_lshl_b32 s{sT0}, s{sMt}, 2")
e(f"s_add_u32 s{sT0}, s{sT0}, s{sWave}")
e(f"s_mul_i32 s{sXbase}, s{sT0}, 28672")
e(f"s_mul_i32 s{sWbase}, s{sWave}, {16*3584}")
e(f"s_lshl_b32 s{sT0}, s{sFt}, 8")
e(f"s_add_u32 s{sWbase}, s{sWbase}, s{sT0}")
e(f"s_lshl_b32 s{sM0x}, s{sWave}, 12")
e(f"s_lshl_b32 s{sM0w}, s{sWave}, 11")
e(f"s_mov_b32 s{sC}, s{sRot}")
for d, n in ((SX, 1835008), (SW1, 1605632), (SW2, 1605632), (SWS, 0x10000000), (SOUT, 1835008), (SB1, 3584), (SB2, 896), (SDBG, 256)):
    e(f"s_mov_b32 s{d+2}, {n}"); e(f"s_mov_b32 s{d+3}, 0x20000")
e(f"v_and_b32 v{t0}, 31, v{vLane}")
e(f"v_lshrrev_b32 v{t1}, 5, v{vLane}")
e(f"v_bfe_u32 v{t2}, v{vLane}, 1, 3")
e(f"v_xor_b32 v{t2}, v{t2}, v{t1}")
e(f"v_lshlrev_b32 v{t0}, 7, v{t0}")
e(f"v_add_u32 v{t0}, s{sM0x}, v{t0}")
for s in range(4):
    e(f"v_xor_b32 v{t3}, {2*s}, v{t2}")
    e(f"v_lshl_add_u32 v{vAB[s]}, v{t3}, 4, v{t0}")
    e(f"v_add_u32 v{vAB2[s]}, {2*SLOT}, v{vAB[s]}")
e(f"v_bfe_u32 v{t0}, v{vLane}, 2, 2")
e(f"v_and_b32 v{t2}, 3, v{vLane}")
e(f"v_bfe_u32 v{t3}, v{vLane}, 4, 1")
e(f"v_lshlrev_b32 v{t2}, 3, v{t2}")
e(f"v_lshl_add_u32 v{t2}, v{t3}, 5, v{t2}")
e(f"v_lshl_add_u32 v{t3}, v{t1}, 3, v{t0}")
e(f"v_lshl_add_u32 v{t3}, v{t3}, 7, v{t2}")
e(f"v_lshrrev_b32 v{t4}, 1, v{t0}")
e(f"v_lshl_add_u32 v{t5}, v{t4}, 6, v{t3}")
e(f"v_add_u32 v{vAA[0]}, 16384, v{t5}")
e(f"v_add_u32 v{vAA2[0]}, {16384 + 2*SLOT}, v{t5}")
e(f"v_add_u32 v{vAA3[0]}, {W1B}, v{t5}")
e(f"v_xor_b32 v{t5}, 64, v{t5}")
e(f"v_add_u32 v{vAA[1]}, 16384, v{t5}")
e(f"v_add_u32 v{vAA2[1]}, {16384 + 2*SLOT}, v{t5}")
e(f"v_add_u32 v{vAA3[1]}, {W1B}, v{t5}")
e(f"s_lshl_b32 s{sStage}, s{sWave}, 13")
e(f"v_lshl_add_u32 v{t3}, v{t1}, 2, v{t0}")
e(f"v_lshl_add_u32 v{t3}, v{t3}, 7, v{t2}")
e(f"v_add_u32 v{t3}, s{sStage}, v{t3}")
e(f"s_lshr_b32 s{sT0}, s{sWave}, 1")
e(f"v_xor_b32 v{t4}, s{sT0}, v{t4}")
e(f"v_lshl_add_u32 v{vAW2[0]}, v{t4}, 6, v{t3}")
e(f"v_xor_b32 v{vAW2[1]}, 64, v{vAW2[0]}")
e(f"v_add_u32 v{vAW2b[0]}, 65536, v{vAW2[0]}")
e(f"v_add_u32 v{vAW2b[1]}, 65536, v{vAW2[1]}")
e(f"v_lshlrev_b32 v{vH0}, 4, v{vLane}")
e(f"s_and_b32 s{sT0}, s{sWave}, 1")
e(f"s_mul_i32 s{sT0}, s{sT0}, 114688")
e(f"v_add_u32 v{vG0}, s{sT0}, v{vH0}")
e(f"s_sub_u32 s{sT0}, 114688, s{sT0}")
e(f"v_add_u32 v{vG1}, s{sT0}, v{vH0}")
e(f"s_mul_i32 s{sW2base}, s{sWave}, {448*896}")
e(f"s_lshl_b32 s{sT0}, s{sFtl}, 7")
e(f"s_add_u32 s{sW2base}, s{sW2base}, s{sT0}")
e(f"v_mov_b32 v{vZero}, 0")
e(f"v_lshlrev_b32 v{t0}, 3, v{t1}")
e(f"v_add_u32 v{t0}, {BIASL}, v{t0}")
e(f"v_bfe_u32 v{t2}, v{vLane}, 3, 2")
e(f"v_and_b32 v{t3}, 7, v{vLane}")
e(f"v_lshlrev_b32 v{t2}, 7, v{t2}")
e(f"v_lshl_add_u32 v{t2}, v{t3}, 2, v{t2}")
e(f"v_lshl_add_u32 v{t2}, v{t1}, 5, v{t2}")
e(f"s_lshl_b32 s{sT1}, s{sM2c}, 9")
e(f"s_add_u32 s{sT1}, s{sT1}, {FLAGS_OFF}")
e("s_waitcnt lgkmcnt(0)")
def srd(d, p):
    e(f"s_mov_b32 s{d}, s{p}"); e(f"s_mov_b32 s{d+1}, s{p+1}")
srd(SX, 4); srd(SW1, 6)
stamp()

def adv():
    e(f"s_add_u32 s{sC}, s{sC}, 1")
    e(f"s_cmp_ge_u32 s{sC}, 7")
    e(f"s_cselect_b32 s{sC}, 0, s{sC}")
def dmaA_ops(i):
    slot = (i % 4) * SLOT
    ops = []
    def setup():
        e(f"s_lshl_b32 s{sT2}, s{sC}, 7")
        e(f"s_add_u32 s{sT2}, s{sT2}, s{sXbase}")
        e(f"s_mul_i32 s{sT3}, s{sC}, {64*3584}")
        e(f"s_add_u32 s{sT3}, s{sT3}, s{sWbase}")
        adv()
    def fx(q):
        def f():
            e(f"s_add_u32 m0, s{sM0x}, {slot + q*1024}")
            if q == 0: setup()
            elif q == 2: e(f"s_add_u32 s{sT2}, s{sT2}, {16*896}")
            else: e("s_nop 0")
            e(f"buffer_load_dwordx4 v{vXo[q&1]}, {sr(SX,4)}, s{sT2} offen lds"); VM.issue(f"c{i}")
        return f
    def fw(q):
        def f():
            e(f"s_add_u32 m0, s{sM0w}, {slot + 16384 + q*1024}")
            if q: e(f"s_add_u32 s{sT3}, s{sT3}, {8*3584}")
            else: e("s_nop 0")
            e(f"buffer_load_dwordx4 v{vWo}, {sr(SW1,4)}, s{sT3} offen lds"); VM.issue(f"c{i}")
        return f
    return [fx(0), fw(0), fx(1), fx(2), fw(1), fx(3)] if i < 7 else []
def dmaB_ops(i):
    def fw(q):
        def f():
            e(f"s_add_u32 m0, s{sM0w}, {W1B + i*8192 + q*1024}")
            if q: e(f"s_add_u32 s{sT3}, s{sT3}, {8*3584}")
            else:
                e(f"s_mul_i32 s{sT3}, s{sC}, {64*3584}")
                e(f"s_add_u32 s{sT3}, s{sT3}, s{sWbase}")
                e(f"s_add_u32 s{sT3}, s{sT3}, 128")
                adv()
            e(f"buffer_load_dwordx4 v{vWo}, {sr(SW1,4)}, s{sT3} offen lds"); VM.issue(f"B{i}")
        return f
    return [fw(0), fw(1)]

for f in dmaA_ops(0): f()
srd(SB1, 8)
e(f"s_cmp_lg_u32 s{sWave}, 2")
e("s_cbranch_scc1 L_nob1")
e(f"s_mov_b32 m0, {BIASL}")
e(f"s_lshl_b32 s{sT0}, s{sFt}, 8")
e(f"v_lshlrev_b32 v{t4}, 2, v{vLane}")
e(f"buffer_load_dword v{t4}, {sr(SB1,4)}, s{sT0} offen lds")
lab("L_nob1")
srd(SWS, 18); srd(SDBG, 16); srd(SW2, 10); srd(SOUT, 14); srd(SB2, 12)
e(f"s_or_b32 s{sT0}, s{sFtl}, s{sWave}")
e(f"s_cmp_lg_u32 s{sT0}, 0")
e("s_cbranch_scc1 L_noleader0")
e(f"buffer_load_dword v{vOld}, v{t2}, {sr(SWS,4)}, s{sT1} offen sc1")
lab("L_noleader0")
for f in dmaA_ops(1): f()
e(f"v_and_b32 v{t3}, 7, v{vLane}")
e(f"v_min_u32 v{t3}, 6, v{t3}")
e(f"v_bfe_u32 v{t4}, v{vLane}, 3, 1")
e(f"v_lshlrev_b32 v{t3}, 2, v{t3}")
e(f"v_lshl_add_u32 v{t3}, v{t4}, 5, v{t3}")
e(f"s_lshl_b32 s{sT0}, s{sM2c}, 2")
e(f"s_add_u32 s{sT0}, s{sT0}, s{sWave}")
e(f"s_lshl_b32 s{sT0}, s{sT0}, 7")
e(f"s_add_u32 s{sT0}, s{sT0}, {FLAGS_OFF}")
e(f"v_add_u32 v{vFlagC}, s{sT0}, v{t3}")
e(f"s_and_b32 s11, s{sWave}, 1")
e(f"s_cmp_eq_u32 s11, 0")
e(f"s_mov_b32 s16, 0x2a2a2a2a")
e(f"s_cselect_b32 s{sAmask}, 0x55555555, s16")
e(f"s_mov_b32 s{sAmask+1}, s{sAmask}")
e(f"s_sub_u32 s12, 4, s11")
e(f"s_add_u32 s13, s11, 3")
def modsmall(dst, src, n):
    e(f"s_mov_b32 s{dst}, s{src}")
    for _ in range(2):
        e(f"s_sub_u32 s16, s{dst}, s{n}")
        e(f"s_cmp_ge_u32 s{dst}, s{n}")
        e(f"s_cselect_b32 s{dst}, s16, s{dst}")
modsmall(14, sRot, 12)
modsmall(15, sRot, 13)
e(f"s_xor_b32 s17, s11, 1")
for v in range(7):
    e(f"s_lshl_b32 s18, s14, 1"); e(f"s_add_u32 s18, s18, s11")
    e(f"s_lshl_b32 s19, s15, 1"); e(f"s_add_u32 s19, s19, s17")
    if v < 3:
        e(f"s_mov_b32 s{sBlk[v]}, s18"); useA = True
    elif v > 3:
        e(f"s_mov_b32 s{sBlk[v]}, s19"); useA = False
    if v < 3:
        e(f"s_add_u32 s14, s14, 1"); e(f"s_cmp_ge_u32 s14, s12"); e(f"s_cselect_b32 s14, 0, s14")
    elif v > 3:
        e(f"s_add_u32 s15, s15, 1"); e(f"s_cmp_ge_u32 s15, s13"); e(f"s_cselect_b32 s15, 0, s15")
    else:
        e(f"s_cmp_eq_u32 s11, 0")
        e(f"s_cselect_b32 s{sBlk[v]}, s18, s19")
        e(f"s_add_u32 s15, s15, s11"); e(f"s_cmp_ge_u32 s15, s13"); e(f"s_cselect_b32 s15, 0, s15")
e(f"s_lshr_b32 s{sT0}, s{sWave}, 1")
e(f"s_lshl_b32 s{sT1}, s{sMt}, 1")
e(f"s_add_u32 s{sM2p}, s{sT0}, s{sT1}")
for ps in range(2):
    e(f"s_lshl_b32 s12, s{sFt}, 1")
    if ps: e(f"s_add_u32 s12, s12, 1")
    e(f"s_mul_i32 s13, s12, 37")
    e(f"s_lshr_b32 s13, s13, 8")
    e(f"s_mul_i32 s14, s13, 7")
    e(f"s_sub_u32 s12, s12, s14")
    e(f"s_lshl_b32 s14, s{sM2p}, 2")
    e(f"s_add_u32 s14, s14, s13")
    e(f"s_lshl_b32 s14, s14, 7")
    e(f"s_lshl_b32 s12, s12, 2")
    e(f"s_add_u32 s14, s14, s12")
    e(f"s_lshl_b32 s12, s11, 5")
    e(f"s_add_u32 s14, s14, s12")
    e(f"s_add_u32 s14, s14, {FLAGS_OFF}")
    e(f"v_mov_b32 v{vFlagP[ps]}, s14")
e(f"s_lshl_b32 s{sT0}, s{sMt}, 2")
e(f"s_add_u32 s{sT0}, s{sT0}, s{sWave}")
e(f"s_mul_i32 s{sT0}, s{sT0}, 112")
e(f"s_lshl_b32 s{sT1}, s{sFt}, 3")
e(f"s_add_u32 s{sT0}, s{sT0}, s{sT1}")
e(f"s_lshl_b32 s{sHoff}, s{sT0}, 10")
C0, C1, ONE = vT[16], vT[18], vT[20]
c0 = -2.0 * 0.7978845608028654 * 1.4426950408889634
c1 = c0 * 0.044715
for r, val in ((C0, c0), (C1, c1), (ONE, 1.0)):
    e(f"v_mov_b32 v{r}, {fbits(val)}"); e(f"v_mov_b32 v{r+1}, {fbits(val)}")
if opt("pre3", 1):
    for f in dmaA_ops(2): f()
wait(vm="c0")
stamp()
e(f"s_or_b32 s{sT0}, s{sFtl}, s{sWave}")
e(f"s_cmp_lg_u32 s{sT0}, 0")
e("s_cbranch_scc1 L_noleader")
e(f"v_and_b32 v{t1}, 31, v{vLane}")
e(f"v_lshrrev_b32 v{t2}, v{t1}, v{vOld}")
e(f"v_and_b32 v{t2}, 1, v{t2}")
e(f"v_cmp_eq_u32 vcc, 0, v{t2}")
e("s_nop 4")
e(f"s_or_b32 s{sT0}, vcc_lo, 0x80808080")
e(f"s_or_b32 s{sT1}, vcc_hi, 0x80808080")
e(f"v_mov_b32 v{t2}, s{sT0}")
e(f"v_mov_b32 v{t3}, s{sT1}")
e(f"s_lshl_b32 s{sT1}, s{sM2c}, 3")
e(f"buffer_store_dwordx2 v[{t2}:{t3}], v{vZero}, {sr(SDBG,4)}, s{sT1} offen sc1")
lab("L_noleader")
e("s_barrier")

def readA_ops(i, s):
    slot = i % 4
    fb = FRAG + 8 * s
    aA = vAA if slot < 2 else vAA2
    aB = vAB if slot < 2 else vAB2
    so = (slot % 2) * SLOT
    def rb():
        e(f"ds_read_b128 {ar(XF + 16*i + 4*s, 4)}, v{aB[s]} offset:{so}"); LG.issue(f"r{i}_{s}")
    def ra(ti, e2):
        def f(): e(f"ds_read_b64_tr_b16 {vr(fb + 4*ti + 2*e2, 2)}, v{aA[ti]} offset:{so + s*2048 + e2*512}"); LG.issue(f"r{i}_{s}")
        return f
    return [rb, ra(0,0), ra(0,1), ra(1,0), ra(1,1)]
def readB_ops(i, s):
    fb = FRAG + 8 * s
    def ra(ti, e2):
        def f(): e(f"ds_read_b64_tr_b16 {vr(fb + 4*ti + 2*e2, 2)}, v{vAA3[ti]} offset:{i*8192 + s*2048 + e2*512}"); LG.issue(f"q{i}_{s}")
        return f
    return [ra(0,0), ra(0,1), ra(1,0), ra(1,1)]
def mfma1(ps, i, s, ti):
    k = 2*ps + ti
    fb = FRAG + 8 * s
    c = vr(BIAS + 16*k, 16) if (i == 0 and s == 0) else vr(acc(k), 16)
    e(f"v_mfma_f32_32x32x16_bf16 {vr(acc(k),16)}, {vr(fb+4*ti,4)}, {ar(XF + 16*i + 4*s, 4)}, {c}")

W2X = [0, 1, 2, 3, 4, 0, 1]
def w2areg(v): return 32*v if v < 4 else XF + 32*(v-4)
def w2_dma_ops(v):
    ops = []
    X = W2X[v]
    for q in range(8):
        def f(q=q):
            if q == 0:
                e(f"s_add_u32 m0, s{sStage}, {X*32768}")
                e(f"s_mul_i32 s{sT2}, s{sBlk[v]}, {64*896}")
                e(f"s_add_u32 s{sT2}, s{sT2}, s{sW2base}")
            if q == 4:
                e(f"s_add_u32 m0, s{sStage}, {X*32768 + 4096}")
                e(f"s_add_u32 s{sT2}, s{sT2}, {32*896}")
            e(f"buffer_load_dwordx4 v{vW2q[q%4]}, {sr(SW2,4)}, s{sT2} offen offset:{(q%4)*1024} lds"); VM.issue(f"w2_{v}")
        ops.append(f)
    return ops
def w2_read_ops(v):
    ops = []
    X = W2X[v]
    base = vAW2 if X <= 1 else (vAW2b if X <= 3 else vAW2c)
    off = (X % 2) * 32768
    for s in range(4):
        for t in range(2):
            for e2 in range(2):
                def f(s=s, t=t, e2=e2):
                    e(f"ds_read_b64_tr_b16 {ar(w2areg(v) + 8*s + 4*t + 2*e2, 2)}, v{base[t]} offset:{off + s*2048 + e2*1024}"); LG.issue(f"w2r{v}")
                ops.append(f)
    return ops

for k in range(4):
    for q in range(4):
        e(f"ds_read_b64 {vr(RAW + 8*(k%2) + 2*q + 16*(k//2), 2)}, v{t0} offset:{64*k + 16*q}"); LG.issue(f"b1_{k//2}")
def unpack_bias(half):
    for k in (2*half, 2*half+1):
        for q in range(4):
            for d in range(2):
                src = RAW + 8*(k%2) + 2*q + 16*(k//2) + d
                e(f"v_lshlrev_b32 v{BIAS + 16*k + 4*q + 2*d}, 16, v{src}")
                e(f"v_and_b32 v{BIAS + 16*k + 4*q + 2*d + 1}, 0xffff0000, v{src}")
wait(lg="b1_0")
for f in readA_ops(0, 0): f()
unpack_bias(0)
for f in readA_ops(0, 1): f()
dq = []
if not opt("pre3", 1): dq += dmaA_ops(2)
for i in range(7):
    if i + 3 < 7: dq += dmaA_ops(i + 3)
    if i == 3:
        dq.append(lambda: e(f"s_mov_b32 s{sC}, s{sRot}"))
        for b in range(7): dq += dmaB_ops(b)
    nper = opt("dper", 8)
    budget = nper
    for st in range(4):
        rds = []
        if st < 2: rds = readA_ops(i, st + 2)
        elif st == 3:
            if i < 6: rds = readA_ops(i + 1, 0) + readA_ops(i + 1, 1)
            else: rds = readB_ops(0, 0) + readB_ops(0, 1)
        if st == 3:
            if i == 0:
                wait(lg="b1_1"); unpack_bias(1)
            if i == 4:
                e(f"s_lshl_b32 s{sT0}, s{sM2p}, 3")
                e(f"s_and_b32 s{sT1}, s{sWave}, 1")
                e(f"s_lshl_b32 s{sT1}, s{sT1}, 2")
                e(f"s_add_u32 s{sT0}, s{sT0}, s{sT1}")
                e(f"s_lshl_b32 s{sT1}, s{sM2c}, 3")
                e(f"buffer_load_dword v{vNonP}, v{vZero}, {sr(SDBG,4)}, s{sT0} offen sc1"); VM.issue("non")
                e(f"buffer_load_dwordx2 v[{vNonC}:{vNonC+1}], v{vZero}, {sr(SDBG,4)}, s{sT1} offen sc1"); VM.issue("non")
            if i == 6:
                while dq: dq.pop(0)()
            wait(vm=(f"c{i+1}" if i < 6 else ["B0", "B1"]), lg=f"r{i}_3")
            e("s_barrier")
        else:
            wait(lg=f"r{i}_{st}")
        for ti in range(2):
            mfma1(0, i, st, ti)
            n = (len(rds) + (1 - ti)) // (2 - ti)
            for _ in range(n): rds.pop(0)()
            if st < 3:
                for _ in range(2 if st == 2 else 1):
                    if dq and budget > 0: dq.pop(0)(); budget -= 1
stamp()
def gcost(f): return getattr(f, 'cost', 8)
def gelu_instrs(k, pk, packed=True):
    a = acc(k); ps, ti = k >> 1, k & 1
    out = []
    for g in range(2):
        base = a + 8*g
        tt = vT[8*g: 8*g+8]
        seq = []
        if packed:
            for p in range(4): seq.append(f"v_pk_mul_f32 {vr(tt[2*p],2)}, {vr(base+2*p,2)}, {vr(base+2*p,2)}")
            for p in range(4): seq.append(f"v_pk_fma_f32 {vr(tt[2*p],2)}, {vr(tt[2*p],2)}, {vr(C1,2)}, {vr(C0,2)}")
            for p in range(4): seq.append(f"v_pk_mul_f32 {vr(tt[2*p],2)}, {vr(tt[2*p],2)}, {vr(base+2*p,2)}")
            for p in range(8): seq.append(f"v_exp_f32 v{tt[p]}, v{tt[p]}")
            for p in range(4): seq.append(f"v_pk_add_f32 {vr(tt[2*p],2)}, {vr(tt[2*p],2)}, {vr(ONE,2)}")
            for p in range(8): seq.append(f"v_rcp_f32 v{tt[p]}, v{tt[p]}")
            for p in range(4): seq.append(f"v_pk_mul_f32 {vr(tt[2*p],2)}, {vr(tt[2*p],2)}, {vr(base+2*p,2)}")
        else:
            for p in range(8): seq.append(f"v_mul_f32 v{tt[p]}, v{base+p}, v{base+p}")
            for p in range(8): seq.append(f"v_fmaak_f32 v{tt[p]}, v{tt[p]}, v{C1}, {fbits(c0)}")
            for p in range(8): seq.append(f"v_mul_f32 v{tt[p]}, v{tt[p]}, v{base+p}")
            for p in range(8): seq.append(f"v_exp_f32 v{tt[p]}, v{tt[p]}")
            for p in range(8): seq.append(f"v_add_f32 v{tt[p]}, 1.0, v{tt[p]}")
            for p in range(8): seq.append(f"v_rcp_f32 v{tt[p]}, v{tt[p]}")
            for p in range(8): seq.append(f"v_mul_f32 v{tt[p]}, v{tt[p]}, v{base+p}")
        for p in range(4): seq.append(f"v_cvt_pk_bf16_f32 v{pk+4*g+p}, v{tt[2*p]}, v{tt[2*p+1]}")
        for sx in seq:
            fn = lambda sx=sx: e(sx)
            fn.cost = 8 if sx.startswith(("v_exp", "v_rcp")) else 4
            out.append(fn)
        def st(g=g):
            off = (4*ps + 2*ti + g) * 1024
            if off >= 4096:
                e(f"s_add_u32 s{sT0}, s{sHoff}, 4096")
                e(f"buffer_store_dwordx4 {vr(pk+4*g,4)}, v{vH0}, {sr(SWS,4)}, s{sT0} offen offset:{off-4096} sc1")
            else:
                e(f"buffer_store_dwordx4 {vr(pk+4*g,4)}, v{vH0}, {sr(SWS,4)}, s{sHoff} offen offset:{off} sc1")
            VM.issue(f"hst{ps}")
        out.append(st)
    return out
def mk_wait_vm(u): return lambda: wait(vm=f"w2_{u}")
def mk_wait_lg(u): return lambda: wait(lg=f"w2r{u}")
def publish(ps):
    lab(f"L_nonp{ps}")
    e(f"v_cmp_ne_u32 vcc, 0, v{vNonP}")
    e(f"s_cbranch_vccnz L_nonp_ok{ps}")
    e(f"s_lshl_b32 s{sT0}, s{sM2p}, 3")
    e(f"s_and_b32 s{sT1}, s{sWave}, 1")
    e(f"s_lshl_b32 s{sT1}, s{sT1}, 2")
    e(f"s_add_u32 s{sT0}, s{sT0}, s{sT1}")
    e(f"buffer_load_dword v{vNonP}, v{vZero}, {sr(SDBG,4)}, s{sT0} offen sc1")
    e("s_waitcnt vmcnt(0)")
    e(f"s_branch L_nonp{ps}")
    lab(f"L_nonp_ok{ps}")
    e(f"buffer_store_dword v{vNonP}, v{vFlagP[ps]}, {sr(SWS,4)}, 0 offen sc1"); VM.issue("flag")
gA = gelu_instrs(0, PK, opt("pkA", 0)) + gelu_instrs(1, PK + 8, opt("pkA", 0))
GS, GE = opt("gs", 2), opt("ge", 56)
dq2 = w2_dma_ops(0) + w2_dma_ops(1) + w2_dma_ops(2)
NB = opt("nb", 24)
sB = [dq2.pop(0) for _ in range(NB)]
SS, SE = opt("ss", 0), opt("se", 54)
pos = {}
tot = sum(gcost(f) for f in gA); accu = 0
for f in gA:
    pos.setdefault(GS + int((GE - GS) * accu / tot), []).append(f); accu += gcost(f)
for n, f in enumerate(sB): pos.setdefault(SS + (SE - SS) * n // len(sB), []).append(f)
def pubA():
    wait(vm=["hst0", "non"])
    publish(0)
    lab("L_nonc")
    e(f"v_cmp_ne_u32 vcc, 0, v{vNonC}")
    e("s_cbranch_vccnz L_nonc_ok")
    e(f"s_lshl_b32 s{sT0}, s{sM2c}, 3")
    e(f"buffer_load_dwordx2 v[{vNonC}:{vNonC+1}], v{vZero}, {sr(SDBG,4)}, s{sT0} offen sc1")
    e("s_waitcnt vmcnt(0)")
    e("s_branch L_nonc")
    lab("L_nonc_ok")
    e(f"v_bfe_u32 v{vOld}, v{vLane}, 3, 1")
    e(f"v_cmp_eq_u32 vcc, 1, v{vOld}")
    e("s_nop 1")
    e(f"v_cndmask_b32 v{vNonS}, v{vNonC}, v{vNonC+1}, vcc")
m = 0
for i in range(7):
    for st in range(4):
        n2 = 4*i + st + 2
        rds = readB_ops(n2 // 4, n2 % 4) if n2 < 28 else []
        if n2 < 28 and n2 % 8 == 0:
            c = n2 // 4
            wait(vm=[f"B{c}", f"B{c+1}"] + (["B6"] if c == 4 else []))
            if c < 6: e("s_barrier")
        wait(lg=f"q{i}_{st}")
        for ti in range(2):
            mfma1(1, i, st, ti)
            for _ in range(2):
                if rds: rds.pop(0)()
            for f in pos.get(m, []): f()
            m += 1
stamp()
vPoll = 36
sH2 = 11
e(f"s_lshl_b32 s{sT0}, s{sM2c}, 1")
e(f"s_mul_i32 s{sT0}, s{sT0}, 112")
e(f"s_mul_i32 s{sT1}, s{sWave}, 28")
e(f"s_add_u32 s{sT0}, s{sT0}, s{sT1}")
e(f"s_lshl_b32 s{sH2}, s{sT0}, 10")
e(f"v_add_u32 v{vAW2c[0]}, 131072, v{vAW2[0]}")
e(f"v_add_u32 v{vAW2c[1]}, 131072, v{vAW2[1]}")
e("s_barrier")
dq2 += w2_dma_ops(3) + w2_dma_ops(4)
for _ in range(min(opt("nburst", 8), len(dq2))): dq2.pop(0)()
HB = 128
def h_ops(v):
    ops = []
    order = [(s, mi) for s in range(4) for mi in range(2)]
    if v == 6: order = [(s, 1) for s in range(4)] + [(s, 0) for s in range(4)]
    for n, (s, mi) in enumerate(order):
        def f(s=s, mi=mi, n=n):
            if n == 0:
                e(f"s_lshl_b32 s{sT2}, s{sBlk[v]}, 12")
                e(f"s_add_u32 s{sT2}, s{sT2}, s{sH2}")
            r = HB + 32*(v%4) + 8*s + 4*mi
            e(f"buffer_load_dwordx4 {vr(r,4)}, v{vG0 if mi==0 else vG1}, {sr(SWS,4)}, s{sT2} offen offset:{s*1024} sc1"); VM.issue(f"h{v}_{s}" if v < 6 else f"h6_{s}_{mi}")
        ops.append(f)
    return ops
def mfma2(v, s, k):
    t, mi = k >> 1, k & 1
    r = HB + 32*(v%4) + 8*s + 4*mi
    c = "0" if (v == 0 and s == 0) else vr(acc(k),16)
    e(f"v_mfma_f32_32x32x16_bf16 {vr(acc(k),16)}, {ar(w2areg(v) + 8*s + 4*t, 4)}, {vr(r,4)}, {c}")
def check(tag, name, masked):
    wait(vm=tag)
    e(f"s_mov_b32 s{sT3}, 0")
    lab(f"L_{name}")
    e(f"v_cmp_ne_u32 vcc, v{vPoll}, v{vNonS}")
    if masked:
        e("s_nop 0")
        e(f"s_and_b64 vcc, vcc, {sr(sAmask,2)}")
        e(f"s_cbranch_scc0 L_{name}_go")
    else:
        e(f"s_cbranch_vccz L_{name}_go")
    e(f"buffer_load_dword v{vPoll}, v{vFlagC}, {sr(SWS,4)}, 0 offen sc1")
    e("s_waitcnt vmcnt(0)")
    e(f"s_add_u32 s{sT3}, s{sT3}, 1")
    e(f"s_cmp_lt_u32 s{sT3}, 0x40000")
    e(f"s_cbranch_scc1 L_{name}")
    lab(f"L_{name}_go")
gB = gelu_instrs(2, PK + 16) + gelu_instrs(3, PK + 24)
pos = {}
sG = [dq2.pop(0) for _ in range(min(opt("ng", 0), len(dq2)))]
for n, f in enumerate(sG): pos.setdefault(4 + (len(gB) - 8) * n // len(sG), []).append(f)
pos.setdefault(opt("pa", 100), []).append(pubA)
for n, f in enumerate(gB):
    f()
    for g in pos.get(n, []): g()
stamp()
post = list(dq2)
for u in (5, 6):
    post += [mk_wait_vm(u-5)] + w2_read_ops(u-5)
for u in (5, 6):
    post += [mk_wait_lg(u-5)] + w2_dma_ops(u)
PUBN = opt("pubn", 40)
for n, f in enumerate(post):
    f()
    if n == PUBN:
        wait(vm="hst1"); publish(1); stamp()
e(f"buffer_load_dword v{vPoll}, v{vFlagC}, {sr(SWS,4)}, 0 offen sc1"); VM.issue("poll1")
e(f"v_lshrrev_b32 v{t0}, 5, v{vLane}")
e(f"v_lshlrev_b32 v{t0}, 3, v{t0}")
e(f"s_lshr_b32 s{sT0}, s{sWave}, 1")
e(f"s_lshl_b32 s{sT0}, s{sT0}, 6")
e(f"s_lshl_b32 s{sT1}, s{sFtl}, 7")
e(f"s_add_u32 s{sT0}, s{sT0}, s{sT1}")
B2R = vT[8]
for q in range(4):
    e(f"buffer_load_dwordx2 {vr(B2R + 2*q, 2)}, v{t0}, {sr(SB2,4)}, s{sT0} offen offset:{16*q}"); VM.issue("b2")
wait(vm="w2_2")
for f in w2_read_ops(2): f()
check("poll1", "pollA", True)
stamp()
e(f"buffer_load_dword v{vPoll}, v{vFlagC}, {sr(SWS,4)}, 0 offen sc1"); VM.issue("poll2")
for f in h_ops(0) + h_ops(1): f()
for f in w2_read_ops(3): f()
vRW, vRR = vT[0], [vT[1], vT[2], vT[3]]
e(f"v_add_u32 v{vRW}, s{sStage}, v{vH0}")
for k in (1, 2, 3):
    e(f"s_xor_b32 s{sT0}, s{sWave}, {k}")
    e(f"s_lshl_b32 s{sT0}, s{sT0}, 13")
    e(f"s_add_u32 s{sT0}, s{sT0}, {[0,0,4096,32768][k]}")
    e(f"v_add_u32 v{vRR[k-1]}, s{sT0}, v{vH0}")
RWOFF = {1: 0, 2: 4096, 3: 32768}
for v in range(6):
    ex = h_ops(v + 2) if v + 2 < 7 else []
    trs = w2_read_ops(v + 4) if v + 4 < 7 else []
    wait(lg=f"w2r{v}")
    if v == 1:
        check("poll2", "pollB", False)
        stamp()
    for s in range(4):
        wait(vm=f"h{v}_{s}")
        for k in range(4):
            mfma2(v, s, k)
            if ex and k % 2 == 1: ex.pop(0)()
            if trs: trs.pop(0)()
stamp()
v = 6
wait(lg="w2r6")
def wr_ops(k):
    return [lambda q=q: e(f"ds_write_b128 v{vRW}, {vr(acc(k) + 4*q, 4)} offset:{RWOFF[k] + q*1024}") for q in range(4)]
BB = 224
fill = []
for q in range(4):
    for d in range(2):
        fill.append(f"v_lshlrev_b32 v{BB + 4*q + 2*d}, 16, v{B2R + 2*q + d}")
        fill.append(f"v_and_b32 v{BB + 4*q + 2*d + 1}, 0xffff0000, v{B2R + 2*q + d}")
vOA = vT[4]
fill += [f"v_and_b32 v{vOA}, 31, v{vLane}", f"v_lshrrev_b32 v{t5}, 5, v{vLane}", f"v_mul_u32_u24 v{vOA}, 896, v{vOA}", f"v_lshl_add_u32 v{vOA}, v{t5}, 4, v{vOA}"]
for s_ in range(4):
    wait(vm=f"h6_{s_}_1")
    mfma2(v, s_, 1); mfma2(v, s_, 3)
for sx in fill[:12]: e(sx)
w = wr_ops(1) + wr_ops(3)
for s_ in range(4):
    wait(vm=f"h6_{s_}_0")
    mfma2(v, s_, 2); w.pop(0)(); w.pop(0)()
for s_ in range(4):
    mfma2(v, s_, 0)
    for sx in fill[12+2*s_: 14+2*s_]: e(sx)
for f in wr_ops(2): f()
e(f"s_lshl_b32 s{sT0}, s{sM2c}, 1")
e(f"s_and_b32 s{sT1}, s{sWave}, 1")
e(f"s_add_u32 s{sT0}, s{sT0}, s{sT1}")
e(f"s_mul_i32 s{sT0}, s{sT0}, {32*896}")
e(f"s_lshl_b32 s{sT1}, s{sFtl}, 7")
e(f"s_add_u32 s{sT0}, s{sT0}, s{sT1}")
e(f"s_lshr_b32 s{sT1}, s{sWave}, 1")
e(f"s_lshl_b32 s{sT1}, s{sT1}, 6")
e(f"s_add_u32 s{sT0}, s{sT0}, s{sT1}")
e("s_waitcnt lgkmcnt(0)")
e("s_barrier")
RD = 128
for k in range(3):
    for q in range(4):
        e(f"ds_read_b128 {vr(RD + 16*k + 4*q, 4)}, v{vRR[k]} offset:{q*1024}")
OWN = acc(0)
for p in range(8): e(f"v_pk_add_f32 {vr(OWN+2*p,2)}, {vr(OWN+2*p,2)}, {vr(BB+2*p,2)}")
for k in range(3):
    e(f"s_waitcnt lgkmcnt({8 - 4*k})")
    for p in range(8): e(f"v_pk_add_f32 {vr(OWN+2*p,2)}, {vr(OWN+2*p,2)}, {vr(RD+16*k+2*p,2)}")
PO = 208
for p in range(8): e(f"v_cvt_pk_bf16_f32 v{PO+p}, v{OWN+2*p}, v{OWN+2*p+1}")
e("s_nop 1")
for qp in range(2):
    e(f"v_permlane32_swap_b32 v{PO+4*qp}, v{PO+4*qp+2}")
    e(f"v_permlane32_swap_b32 v{PO+4*qp+1}, v{PO+4*qp+3}")
for qp in range(2):
    e(f"buffer_store_dwordx4 {vr(PO+4*qp,4)}, v{vOA}, {sr(SOUT,4)}, s{sT0} offen offset:{32*qp}")
if STAMPS:
    stamp()
    e("s_waitcnt vmcnt(0)")
    stamp()
    e("s_memrealtime s[4:5]")
    e("s_waitcnt lgkmcnt(0)")
    e(f"s_lshl_b32 s6, s2, 2")
    e(f"s_add_u32 s6, s6, s{sWave}")
    e(f"s_lshl_b32 s6, s6, 6")
    e(f"s_add_u32 s6, s6, 0x8000000")
    e("v_mov_b32 v4, s100"); e("v_mov_b32 v5, s4")
    for k in range(14):
        if k < nstamp[0]:
            e(f"s_sub_u32 s7, s{74+2*k}, s98"); e(f"v_mov_b32 v{6+k}, s7")
        else: e(f"v_mov_b32 v{6+k}, 0")
    e("v_mov_b32 v20, s6")
    e(f"v_cmp_eq_u32 vcc, 0, v{vLane}")
    e("s_and_saveexec_b64 s[8:9], vcc")
    for k in range(4):
        e(f"buffer_store_dwordx4 v[{4+4*k}:{7+4*k}], v20, {sr(SWS,4)}, 0 offen offset:{16*k}")
lab("L_end")
e("s_endpgm")
lab("L_spare")
if PF:
    e(f"s_cmp_ge_u32 s2, {GRID}")
    e("s_cbranch_scc1 L_end2")
    e("s_load_dwordx2 s[4:5], s[0:1], 24")
    e("s_load_dwordx2 s[6:7], s[0:1], 8")
    e("v_and_b32 v1, 63, v0")
    e("v_lshrrev_b32 v2, 6, v0")
    e("s_and_b32 s8, s2, 7")
    e("v_readfirstlane_b32 s9, v2")
    e(f"s_sub_u32 s14, s2, {NWG}")
    e("s_lshr_b32 s10, s14, 3")
    e("s_mul_i32 s10, s10, 401408")
    e("s_mul_i32 s11, s8, 50176")
    e("s_lshl_b32 s12, s9, 13")
    e("s_add_u32 s11, s11, s12")
    e("v_lshlrev_b32 v3, 7, v1")
    e("s_mov_b32 s22, 1605632")
    e("s_mov_b32 s23, 0x20000")
    e("s_mov_b32 s26, 1605632")
    e("s_mov_b32 s27, 0x20000")
    e("s_lshl_b32 s13, s14, 2")
    e("s_add_u32 s13, s13, s9")
    e("s_mul_i32 s13, s13, 12544")
    e("v_min_u32 v6, 48, v1")
    e("v_lshlrev_b32 v6, 8, v6")
    e("s_waitcnt lgkmcnt(0)")
    e("s_mov_b32 s20, s4"); e("s_mov_b32 s21, s5")
    e("s_mov_b32 s24, s6"); e("s_mov_b32 s25, s7")
    if opt("pfw1", 1):
        e("buffer_load_dword v7, v6, s[24:27], s13 offen offset:128")
    for n in range(13):
        e("v_add_u32 v4, s11, v3")
        e("v_subrev_u32 v5, 401408, v4")
        e("v_min_u32 v4, v4, v5")
        e(f"buffer_load_dword v{8+n}, v4, s[20:23], s10 offen")
        e("s_add_u32 s11, s11, 32768")
        e("s_sub_u32 s12, s11, 401408")
        e("s_min_u32 s11, s11, s12")
    e("s_waitcnt vmcnt(0)")
    lab("L_end2")
e("s_endpgm")
kd = f""".section .rodata,"a"
.p2align 6
.amdhsa_kernel {NAME}
  .amdhsa_next_free_vgpr 512
  .amdhsa_next_free_sgpr 102
  .amdhsa_accum_offset 256
  .amdhsa_group_segment_fixed_size 0
  .amdhsa_kernarg_size 64
  .amdhsa_user_sgpr_count 2
  .amdhsa_user_sgpr_kernarg_segment_ptr 1
  .amdhsa_system_sgpr_workgroup_id_x 1
.end_amdhsa_kernel
"""
open(OUT, "w").write(top + "\n".join(L) + "\n" + kd)
```

```python
import sys, struct
OUT = sys.argv[1] if len(sys.argv) > 1 else "standalone__dense_activation_gelu__prompt.s"
STAMPS = int(sys.argv[2]) if len(sys.argv) > 2 else 0
OPT = dict(a.split("=") for a in sys.argv[3:])
def opt(k, d): return int(OPT.get(k, d))
NAME = "standalone__dense_activation_gelu__prompt_kernel"
NWG = 224
PF = opt("pf", 1)
GRID = 256 if PF else 224
FLAGS_OFF = 0x800000
L = []
def e(s): L.append("  " + s)
def lab(s): L.append(s + ":")

class Ctr:
    def __init__(self, maxv): self.q = []; self.maxv = maxv
    def issue(self, tag): self.q.append(tag)
    def need(self, tags):
        if isinstance(tags, str): tags = [tags]
        last = -1
        for i, t in enumerate(self.q):
            if t in tags: last = i
        if last < 0: return None
        n = len(self.q) - 1 - last
        self.q = self.q[last+1:]
        return min(n, self.maxv)
    def drain(self): self.q = []
VM = Ctr(63); LG = Ctr(15)
def wait(vm=None, lg=None):
    parts = []
    if vm is not None:
        n = VM.need(vm)
        if n is not None: parts.append(f"vmcnt({n})")
    if lg is not None:
        n = LG.need(lg)
        if n is not None: parts.append(f"lgkmcnt({n})")
    if parts: e("s_waitcnt " + " ".join(parts))
nstamp = [0]
def stamp():
    if STAMPS:
        i = nstamp[0]; nstamp[0] += 1
        assert i < 12
        e(f"s_memtime s[{74+2*i}:{75+2*i}]")

SX, SW1, SW2, SWS, SOUT, SB1, SB2, SDBG = 20, 24, 28, 32, 36, 40, 44, 48
sWave, sXcd, sMtl, sFtl, sMt, sFt, sRot, sM2c = 52, 53, 54, 55, 56, 57, 58, 59
sT0, sT1, sT2, sT3 = 60, 61, 62, 63
sXbase, sWbase, sM0x, sM0w, sC = 64, 65, 66, 67, 68
sHoff, sW2base, sStage = 69, 70, 71
sAmask = 72
sM2p = 3
sPkA, sPkB = 4, 5
def hb(dst, n):
    e(f"s_bfe_u32 s{dst}, s{sPkA if n < 8 else sPkB}, {(4 << 16) | (4 * (n % 8))}")
vLane = 1
vXo = [2, 3]
vWo = 4
vW2o = 5
vW2q = [5, 60, 61, 62]
vAB = [6, 7, 8, 9]; vAB2 = [10, 11, 12, 13]
vAA = [14, 15]; vAA2 = [16, 17]; vAA3 = [18, 19]
vAW2 = [20, 21]; vAW2b = [22, 23]; vAW2c = [63, 37]
vH0 = 24
vG0, vG1 = 25, 26
vFlagP = [27, 28]; vFlagC = 29
vNonP = 30; vNonC = 32
vNonS = 31
vOld, vZero = 34, 35
vT = list(range(38, 60))
ACC = 64; BIAS = 128; FRAG = 192; PK = 224; RAW = 224
XF = 128
SLOT = 24576; W1B = 98304; BIASL = 155648
def acc(k): return ACC + 16 * k
def vr(a, n): return f"v[{a}:{a+n-1}]"
def ar(a, n): return f"a[{a}:{a+n-1}]"
def sr(a, n): return f"s[{a}:{a+n-1}]"
def fbits(x): return "0x%08x" % struct.unpack("<I", struct.pack("<f", x))[0]
t0, t1, t2, t3, t4, t5 = vT[0:6]

hdr = open("standalone__dense_activation_gelu__prompt.s.ref").read().split("; Override")[0]
top = hdr + f"; Fused MLP: phase 1 h=gelu(x@w1+b1) tiles -> d_ws (write-through) + flags, phase 2 out=h@w2+b2.\n; @launch grid=({GRID},1,1) block=(256,1,1) lds=163840\n"
top += f'.amdgcn_target "amdgcn-amd-amdhsa--gfx950"\n.text\n.globl {NAME}\n.p2align 8\n.type {NAME},@function\n{NAME}:\n'

if STAMPS:
    e("s_memrealtime s[100:101]")
    e("s_memtime s[98:99]")
e(f"s_cmp_ge_u32 s2, {NWG}")
e("s_cbranch_scc1 L_spare")
e("s_load_dwordx16 s[4:19], s[0:1], 0")
e(f"v_and_b32 v{vLane}, 63, v0")
e(f"v_lshrrev_b32 v{t0}, 6, v0")
e(f"s_and_b32 s{sXcd}, s2, 7")
e(f"v_readfirstlane_b32 s{sWave}, v{t0}")
e("s_nop 3")
if opt("cpf", 1):
    NL = opt("cpfn", 4)
    e(f"s_cmp_lg_u32 s{sWave}, 1")
    e("s_cbranch_scc1 L_nocpf")
    e(f"s_getpc_b64 s[{sT0}:{sT1}]")
    lab("L_pc")
    e(f"s_lshr_b32 s{sT2}, s2, 3")
    e(f"s_mul_i32 s{sT2}, s{sT2}, {NL}")
    e(f"v_min_u32 v{t4}, {NL-1}, v{vLane}")
    e(f"v_add_lshl_u32 v{t4}, v{t4}, s{sT2}, 7")
    e(f"v_min_u32 v{t4}, L_end-L_pc, v{t4}")
    e(f"global_load_dword v37, v{t4}, s[{sT0}:{sT1}]")
    lab("L_nocpf")
e(f"s_lshr_b32 s{sT0}, s2, 3")
e(f"s_mul_i32 s{sMtl}, s{sT0}, 37")
e(f"s_lshr_b32 s{sMtl}, s{sMtl}, 8")
e(f"s_mul_i32 s{sT1}, s{sMtl}, 7")
e(f"s_sub_u32 s{sFtl}, s{sT0}, s{sT1}")
e(f"s_lshr_b32 s{sMt}, s{sXcd}, 1")
e(f"s_lshl_b32 s{sMt}, s{sMt}, 2")
e(f"s_add_u32 s{sMt}, s{sMt}, s{sMtl}")
e(f"s_and_b32 s{sFt}, s{sXcd}, 1")
e(f"s_mul_i32 s{sFt}, s{sFt}, 7")
e(f"s_add_u32 s{sFt}, s{sFt}, s{sFtl}")
e(f"s_lshl_b32 s{sM2c}, s{sXcd}, 2")
e(f"s_add_u32 s{sM2c}, s{sM2c}, s{sMtl}")
e(f"s_lshl_b32 s{sRot}, s{sMtl}, 1")
e(f"s_add_u32 s{sRot}, s{sRot}, s{sFtl}")
e(f"s_add_u32 s{sRot}, s{sRot}, s{sXcd}")
e(f"s_mul_i32 s{sT0}, s{sRot}, 37")
e(f"s_lshr_b32 s{sT0}, s{sT0}, 8")
e(f"s_mul_i32 s{sT0}, s{sT0}, 7")
e(f"s_sub_u32 s{sRot}, s{sRot}, s{sT0}")
e(f"v_lshrrev_b32 v{t0}, 3, v{vLane}")
e(f"v_and_b32 v{t1}, 7, v{vLane}")
e(f"v_lshrrev_b32 v{t2}, 1, v{t0}")
e(f"v_xor_b32 v{t3}, v{t1}, v{t2}")
e(f"v_xor_b32 v{t4}, 4, v{t3}")
e(f"v_mul_u32_u24 v{t5}, 896, v{t0}")
e(f"v_lshl_add_u32 v{vXo[0]}, v{t3}, 4, v{t5}")
e(f"v_lshl_add_u32 v{vXo[1]}, v{t4}, 4, v{t5}")
e(f"v_add_u32 v{vXo[1]}, {8*896}, v{vXo[1]}")
e(f"v_and_b32 v{t2}, 1, v{t2}")
e(f"v_lshlrev_b32 v{t2}, 2, v{t2}")
e(f"v_xor_b32 v{t2}, v{t1}, v{t2}")
e(f"v_lshl_add_u32 v{vW2o}, v{t2}, 4, v{t5}")
for q in range(1, 4): e(f"v_add_u32 v{vW2q[q]}, {q*(7168-1024)}, v{vW2o}")
e(f"v_mul_u32_u24 v{t5}, 3584, v{t0}")
e(f"v_lshl_add_u32 v{vWo}, v{t2}, 4, v{t5}")
e(f"s_lshl_b32 s{sT0}, s{sMt}, 2")
e(f"s_add_u32 s{sT0}, s{sT0}, s{sWave}")
e(f"s_mul_i32 s{sXbase}, s{sT0}, 28672")
e(f"s_mul_i32 s{sWbase}, s{sWave}, {16*3584}")
e(f"s_lshl_b32 s{sT0}, s{sFt}, 8")
e(f"s_add_u32 s{sWbase}, s{sWbase}, s{sT0}")
e(f"s_lshl_b32 s{sM0x}, s{sWave}, 12")
e(f"s_lshl_b32 s{sM0w}, s{sWave}, 11")
e(f"s_mov_b32 s{sC}, s{sRot}")
for d, n in ((SX, 1835008), (SW1, 1605632), (SW2, 1605632), (SWS, 0x10000000), (SOUT, 1835008), (SB1, 3584), (SB2, 896), (SDBG, 256)):
    e(f"s_mov_b32 s{d+2}, {n}"); e(f"s_mov_b32 s{d+3}, 0x20000")
e(f"v_and_b32 v{t0}, 31, v{vLane}")
e(f"v_lshrrev_b32 v{t1}, 5, v{vLane}")
e(f"v_bfe_u32 v{t2}, v{vLane}, 1, 3")
e(f"v_xor_b32 v{t2}, v{t2}, v{t1}")
e(f"v_lshlrev_b32 v{t0}, 7, v{t0}")
e(f"v_add_u32 v{t0}, s{sM0x}, v{t0}")
for s in range(4):
    e(f"v_xor_b32 v{t3}, {2*s}, v{t2}")
    e(f"v_lshl_add_u32 v{vAB[s]}, v{t3}, 4, v{t0}")
    e(f"v_add_u32 v{vAB2[s]}, {2*SLOT}, v{vAB[s]}")
e(f"v_bfe_u32 v{t0}, v{vLane}, 2, 2")
e(f"v_and_b32 v{t2}, 3, v{vLane}")
e(f"v_bfe_u32 v{t3}, v{vLane}, 4, 1")
e(f"v_lshlrev_b32 v{t2}, 3, v{t2}")
e(f"v_lshl_add_u32 v{t2}, v{t3}, 5, v{t2}")
e(f"v_lshl_add_u32 v{t3}, v{t1}, 3, v{t0}")
e(f"v_lshl_add_u32 v{t3}, v{t3}, 7, v{t2}")
e(f"v_lshrrev_b32 v{t4}, 1, v{t0}")
e(f"v_lshl_add_u32 v{t5}, v{t4}, 6, v{t3}")
e(f"v_add_u32 v{vAA[0]}, 16384, v{t5}")
e(f"v_add_u32 v{vAA2[0]}, {16384 + 2*SLOT}, v{t5}")
e(f"v_add_u32 v{vAA3[0]}, {W1B}, v{t5}")
e(f"v_xor_b32 v{t5}, 64, v{t5}")
e(f"v_add_u32 v{vAA[1]}, 16384, v{t5}")
e(f"v_add_u32 v{vAA2[1]}, {16384 + 2*SLOT}, v{t5}")
e(f"v_add_u32 v{vAA3[1]}, {W1B}, v{t5}")
e(f"s_lshl_b32 s{sStage}, s{sWave}, 13")
e(f"v_lshl_add_u32 v{t3}, v{t1}, 2, v{t0}")
e(f"v_lshl_add_u32 v{t3}, v{t3}, 7, v{t2}")
e(f"v_add_u32 v{t3}, s{sStage}, v{t3}")
e(f"s_lshr_b32 s{sT0}, s{sWave}, 1")
e(f"v_xor_b32 v{t4}, s{sT0}, v{t4}")
e(f"v_lshl_add_u32 v{vAW2[0]}, v{t4}, 6, v{t3}")
e(f"v_xor_b32 v{vAW2[1]}, 64, v{vAW2[0]}")
e(f"v_add_u32 v{vAW2b[0]}, 65536, v{vAW2[0]}")
e(f"v_add_u32 v{vAW2b[1]}, 65536, v{vAW2[1]}")
e(f"v_lshlrev_b32 v{vH0}, 4, v{vLane}")
e(f"s_and_b32 s{sT0}, s{sWave}, 1")
e(f"s_mul_i32 s{sT0}, s{sT0}, 114688")
e(f"v_add_u32 v{vG0}, s{sT0}, v{vH0}")
e(f"s_sub_u32 s{sT0}, 114688, s{sT0}")
e(f"v_add_u32 v{vG1}, s{sT0}, v{vH0}")
e(f"s_mul_i32 s{sW2base}, s{sWave}, {448*896}")
e(f"s_lshl_b32 s{sT0}, s{sFtl}, 7")
e(f"s_add_u32 s{sW2base}, s{sW2base}, s{sT0}")
e(f"v_mov_b32 v{vZero}, 0")
e(f"v_lshlrev_b32 v{t0}, 3, v{t1}")
e(f"v_add_u32 v{t0}, {BIASL}, v{t0}")
e(f"v_bfe_u32 v{t2}, v{vLane}, 3, 2")
e(f"v_and_b32 v{t3}, 7, v{vLane}")
e(f"v_lshlrev_b32 v{t2}, 7, v{t2}")
e(f"v_lshl_add_u32 v{t2}, v{t3}, 2, v{t2}")
e(f"v_lshl_add_u32 v{t2}, v{t1}, 5, v{t2}")
e(f"s_lshl_b32 s{sT1}, s{sM2c}, 9")
e(f"s_add_u32 s{sT1}, s{sT1}, {FLAGS_OFF}")
e("s_waitcnt lgkmcnt(0)")
def srd(d, p):
    e(f"s_mov_b32 s{d}, s{p}"); e(f"s_mov_b32 s{d+1}, s{p+1}")
srd(SX, 4); srd(SW1, 6)
stamp()

def adv():
    e(f"s_add_u32 s{sC}, s{sC}, 1")
    e(f"s_cmp_ge_u32 s{sC}, 7")
    e(f"s_cselect_b32 s{sC}, 0, s{sC}")
def dmaA_ops(i):
    slot = (i % 4) * SLOT
    ops = []
    def setup():
        e(f"s_lshl_b32 s{sT2}, s{sC}, 7")
        e(f"s_add_u32 s{sT2}, s{sT2}, s{sXbase}")
        e(f"s_mul_i32 s{sT3}, s{sC}, {64*3584}")
        e(f"s_add_u32 s{sT3}, s{sT3}, s{sWbase}")
        adv()
    def fx(q):
        def f():
            e(f"s_add_u32 m0, s{sM0x}, {slot + q*1024}")
            if q == 0: setup()
            elif q == 2: e(f"s_add_u32 s{sT2}, s{sT2}, {16*896}")
            else: e("s_nop 0")
            e(f"buffer_load_dwordx4 v{vXo[q&1]}, {sr(SX,4)}, s{sT2} offen lds"); VM.issue(f"c{i}")
        return f
    def fw(q):
        def f():
            e(f"s_add_u32 m0, s{sM0w}, {slot + 16384 + q*1024}")
            if q: e(f"s_add_u32 s{sT3}, s{sT3}, {8*3584}")
            else: e("s_nop 0")
            e(f"buffer_load_dwordx4 v{vWo}, {sr(SW1,4)}, s{sT3} offen lds"); VM.issue(f"c{i}")
        return f
    return [fx(0), fw(0), fx(1), fx(2), fw(1), fx(3)] if i < 7 else []
def dmaB_ops(i):
    def fw(q):
        def f():
            e(f"s_add_u32 m0, s{sM0w}, {W1B + i*8192 + q*1024}")
            if q: e(f"s_add_u32 s{sT3}, s{sT3}, {8*3584}")
            else:
                e(f"s_mul_i32 s{sT3}, s{sC}, {64*3584}")
                e(f"s_add_u32 s{sT3}, s{sT3}, s{sWbase}")
                e(f"s_add_u32 s{sT3}, s{sT3}, 128")
                adv()
            e(f"buffer_load_dwordx4 v{vWo}, {sr(SW1,4)}, s{sT3} offen lds"); VM.issue(f"B{i}")
        return f
    return [fw(0), fw(1)]

for f in dmaA_ops(0): f()
srd(SB1, 8)
e(f"s_cmp_lg_u32 s{sWave}, 2")
e("s_cbranch_scc1 L_nob1")
e(f"s_mov_b32 m0, {BIASL}")
e(f"s_lshl_b32 s{sT0}, s{sFt}, 8")
e(f"v_lshlrev_b32 v{t4}, 2, v{vLane}")
e(f"buffer_load_dword v{t4}, {sr(SB1,4)}, s{sT0} offen lds")
lab("L_nob1")
srd(SWS, 18); srd(SDBG, 16); srd(SW2, 10); srd(SOUT, 14); srd(SB2, 12)
e(f"s_or_b32 s{sT0}, s{sFtl}, s{sWave}")
e(f"s_cmp_lg_u32 s{sT0}, 0")
e("s_cbranch_scc1 L_noleader0")
e(f"buffer_load_dword v{vOld}, v{t2}, {sr(SWS,4)}, s{sT1} offen sc1")
lab("L_noleader0")
for f in dmaA_ops(1): f()
e(f"v_and_b32 v{t3}, 7, v{vLane}")
e(f"v_min_u32 v{t3}, 6, v{t3}")
e(f"v_bfe_u32 v{t4}, v{vLane}, 3, 1")
e(f"v_lshlrev_b32 v{t3}, 2, v{t3}")
e(f"v_lshl_add_u32 v{t3}, v{t4}, 5, v{t3}")
e(f"s_lshl_b32 s{sT0}, s{sM2c}, 2")
e(f"s_add_u32 s{sT0}, s{sT0}, s{sWave}")
e(f"s_lshl_b32 s{sT0}, s{sT0}, 7")
e(f"s_add_u32 s{sT0}, s{sT0}, {FLAGS_OFF}")
e(f"v_add_u32 v{vFlagC}, s{sT0}, v{t3}")
e(f"s_and_b32 s11, s{sWave}, 1")
e(f"s_cmp_eq_u32 s11, 0")
e(f"s_mov_b32 s16, 0x2a2a2a2a")
e(f"s_cselect_b32 s{sAmask}, 0x55555555, s16")
e(f"s_mov_b32 s{sAmask+1}, s{sAmask}")
e(f"s_lshl_b32 s17, s11, 1")
e(f"s_sub_u32 s12, 8, s17")
e(f"s_add_u32 s13, s17, 6")
e(f"s_sub_u32 s18, 2, s17")
e(f"s_mov_b32 s{sPkA}, 0"); e(f"s_mov_b32 s{sPkB}, 0")
def mod1(dst, n):
    e(f"s_sub_u32 s16, s{dst}, s{n}"); e(f"s_cmp_ge_u32 s{dst}, s{n}"); e(f"s_cselect_b32 s{dst}, s16, s{dst}")
e(f"s_mov_b32 s14, s{sRot}"); mod1(14, 12)
e(f"s_mov_b32 s15, s{sRot}"); mod1(15, 13)
def elem(idx, base):
    e(f"s_lshr_b32 s19, s{idx}, 1"); e(f"s_lshl_b32 s19, s19, 2"); e(f"s_and_b32 s16, s{idx}, 1")
    e(f"s_add_u32 s19, s19, s16"); e(f"s_add_u32 s19, s19, s{base}")
for n in range(14):
    dstp = sPkA if n < 8 else sPkB
    sh = 4 * (n % 8)
    if n < 6:
        elem(14, 17)
        e(f"s_add_u32 s14, s14, 1"); mod1(14, 12)
    elif n >= 8:
        elem(15, 18)
        e(f"s_add_u32 s15, s15, 1"); mod1(15, 13)
    else:
        elem(14, 17); e(f"s_mov_b32 s10, s19")
        elem(15, 18)
        e(f"s_cmp_eq_u32 s11, 0"); e(f"s_cselect_b32 s19, s10, s19")
        e(f"s_add_u32 s14, s14, 1"); mod1(14, 12)
        e(f"s_add_u32 s15, s15, s11"); mod1(15, 13)
    e(f"s_lshl_b32 s19, s19, {sh}")
    e(f"s_or_b32 s{dstp}, s{dstp}, s19")
e(f"s_lshr_b32 s{sT0}, s{sWave}, 1")
e(f"s_lshl_b32 s{sT1}, s{sMt}, 1")
e(f"s_add_u32 s{sM2p}, s{sT0}, s{sT1}")
for ps in range(2):
    e(f"s_lshl_b32 s12, s{sFt}, 1")
    if ps: e(f"s_add_u32 s12, s12, 1")
    e(f"s_mul_i32 s13, s12, 37")
    e(f"s_lshr_b32 s13, s13, 8")
    e(f"s_mul_i32 s14, s13, 7")
    e(f"s_sub_u32 s12, s12, s14")
    e(f"s_lshl_b32 s14, s{sM2p}, 2")
    e(f"s_add_u32 s14, s14, s13")
    e(f"s_lshl_b32 s14, s14, 7")
    e(f"s_lshl_b32 s12, s12, 2")
    e(f"s_add_u32 s14, s14, s12")
    e(f"s_lshl_b32 s12, s11, 5")
    e(f"s_add_u32 s14, s14, s12")
    e(f"s_add_u32 s14, s14, {FLAGS_OFF}")
    e(f"v_mov_b32 v{vFlagP[ps]}, s14")
e(f"s_lshl_b32 s{sT0}, s{sMt}, 2")
e(f"s_add_u32 s{sT0}, s{sT0}, s{sWave}")
e(f"s_mul_i32 s{sT0}, s{sT0}, 112")
e(f"s_lshl_b32 s{sT1}, s{sFt}, 3")
e(f"s_add_u32 s{sT0}, s{sT0}, s{sT1}")
e(f"s_lshl_b32 s{sHoff}, s{sT0}, 10")
C0, C1, ONE = vT[16], vT[18], vT[20]
c0 = -2.0 * 0.7978845608028654 * 1.4426950408889634
c1 = c0 * 0.044715
for r, val in ((C0, c0), (C1, c1), (ONE, 1.0)):
    e(f"v_mov_b32 v{r}, {fbits(val)}"); e(f"v_mov_b32 v{r+1}, {fbits(val)}")
if opt("pre3", 1):
    for f in dmaA_ops(2): f()
wait(vm="c0")
stamp()
e(f"s_or_b32 s{sT0}, s{sFtl}, s{sWave}")
e(f"s_cmp_lg_u32 s{sT0}, 0")
e("s_cbranch_scc1 L_noleader")
e(f"v_and_b32 v{t1}, 31, v{vLane}")
e(f"v_lshrrev_b32 v{t2}, v{t1}, v{vOld}")
e(f"v_and_b32 v{t2}, 1, v{t2}")
e(f"v_cmp_eq_u32 vcc, 0, v{t2}")
e("s_nop 4")
e(f"s_or_b32 s{sT0}, vcc_lo, 0x80808080")
e(f"s_or_b32 s{sT1}, vcc_hi, 0x80808080")
e(f"v_mov_b32 v{t2}, s{sT0}")
e(f"v_mov_b32 v{t3}, s{sT1}")
e(f"s_lshl_b32 s{sT1}, s{sM2c}, 3")
e(f"buffer_store_dwordx2 v[{t2}:{t3}], v{vZero}, {sr(SDBG,4)}, s{sT1} offen sc1")
lab("L_noleader")
e("s_barrier")

def readA_ops(i, s):
    slot = i % 4
    fb = FRAG + 8 * s
    aA = vAA if slot < 2 else vAA2
    aB = vAB if slot < 2 else vAB2
    so = (slot % 2) * SLOT
    def rb():
        e(f"ds_read_b128 {ar(XF + 16*i + 4*s, 4)}, v{aB[s]} offset:{so}"); LG.issue(f"r{i}_{s}")
    def ra(ti, e2):
        def f(): e(f"ds_read_b64_tr_b16 {vr(fb + 4*ti + 2*e2, 2)}, v{aA[ti]} offset:{so + s*2048 + e2*512}"); LG.issue(f"r{i}_{s}")
        return f
    return [rb, ra(0,0), ra(0,1), ra(1,0), ra(1,1)]
def readB_ops(i, s):
    fb = FRAG + 8 * s
    def ra(ti, e2):
        def f(): e(f"ds_read_b64_tr_b16 {vr(fb + 4*ti + 2*e2, 2)}, v{vAA3[ti]} offset:{i*8192 + s*2048 + e2*512}"); LG.issue(f"q{i}_{s}")
        return f
    return [ra(0,0), ra(0,1), ra(1,0), ra(1,1)]
def mfma1(ps, i, s, ti):
    k = 2*ps + ti
    fb = FRAG + 8 * s
    c = vr(BIAS + 16*k, 16) if (i == 0 and s == 0) else vr(acc(k), 16)
    e(f"v_mfma_f32_32x32x16_bf16 {vr(acc(k),16)}, {vr(fb+4*ti,4)}, {ar(XF + 16*i + 4*s, 4)}, {c}")

W2X = [0, 1, 2, 3, 4, 0, 1]
def w2areg(v): return 32*v if v < 4 else XF + 32*(v-4)
def w2_dma_ops(v):
    ops = []
    X = W2X[v]
    for q in range(8):
        def f(q=q):
            if q == 0:
                e(f"s_add_u32 m0, s{sStage}, {X*32768}")
                hb(sT2, 2*v)
                e(f"s_mul_i32 s{sT2}, s{sT2}, {32*896}")
                e(f"s_add_u32 s{sT2}, s{sT2}, s{sW2base}")
            if q == 4:
                e(f"s_add_u32 m0, s{sStage}, {X*32768 + 4096}")
                hb(sT2, 2*v + 1)
                e(f"s_mul_i32 s{sT2}, s{sT2}, {32*896}")
                e(f"s_add_u32 s{sT2}, s{sT2}, s{sW2base}")
            e(f"buffer_load_dwordx4 v{vW2q[q%4]}, {sr(SW2,4)}, s{sT2} offen offset:{(q%4)*1024} lds"); VM.issue(f"w2_{v}")
        ops.append(f)
    return ops
def w2_read_ops(v):
    ops = []
    X = W2X[v]
    base = vAW2 if X <= 1 else (vAW2b if X <= 3 else vAW2c)
    off = (X % 2) * 32768
    for s in range(4):
        for t in range(2):
            for e2 in range(2):
                def f(s=s, t=t, e2=e2):
                    e(f"ds_read_b64_tr_b16 {ar(w2areg(v) + 8*s + 4*t + 2*e2, 2)}, v{base[t]} offset:{off + s*2048 + e2*1024}"); LG.issue(f"w2r{v}")
                ops.append(f)
    return ops

for k in range(4):
    for q in range(4):
        e(f"ds_read_b64 {vr(RAW + 8*(k%2) + 2*q + 16*(k//2), 2)}, v{t0} offset:{64*k + 16*q}"); LG.issue(f"b1_{k//2}")
def unpack_bias(half):
    for k in (2*half, 2*half+1):
        for q in range(4):
            for d in range(2):
                src = RAW + 8*(k%2) + 2*q + 16*(k//2) + d
                e(f"v_lshlrev_b32 v{BIAS + 16*k + 4*q + 2*d}, 16, v{src}")
                e(f"v_and_b32 v{BIAS + 16*k + 4*q + 2*d + 1}, 0xffff0000, v{src}")
wait(lg="b1_0")
for f in readA_ops(0, 0): f()
unpack_bias(0)
for f in readA_ops(0, 1): f()
dq = []
if not opt("pre3", 1): dq += dmaA_ops(2)
for i in range(7):
    if i + 3 < 7: dq += dmaA_ops(i + 3)
    if i == 3:
        dq.append(lambda: e(f"s_mov_b32 s{sC}, s{sRot}"))
        for b in range(7): dq += dmaB_ops(b)
    nper = opt("dper", 8)
    budget = nper
    for st in range(4):
        rds = []
        if st < 2: rds = readA_ops(i, st + 2)
        elif st == 3:
            if i < 6: rds = readA_ops(i + 1, 0) + readA_ops(i + 1, 1)
            else: rds = readB_ops(0, 0) + readB_ops(0, 1)
        if st == 3:
            if i == 0:
                wait(lg="b1_1"); unpack_bias(1)
            if i == 4:
                e(f"s_lshl_b32 s{sT0}, s{sM2p}, 3")
                e(f"s_and_b32 s{sT1}, s{sWave}, 1")
                e(f"s_lshl_b32 s{sT1}, s{sT1}, 2")
                e(f"s_add_u32 s{sT0}, s{sT0}, s{sT1}")
                e(f"s_lshl_b32 s{sT1}, s{sM2c}, 3")
                e(f"buffer_load_dword v{vNonP}, v{vZero}, {sr(SDBG,4)}, s{sT0} offen sc1"); VM.issue("non")
                e(f"buffer_load_dwordx2 v[{vNonC}:{vNonC+1}], v{vZero}, {sr(SDBG,4)}, s{sT1} offen sc1"); VM.issue("non")
            if i == 6:
                while dq: dq.pop(0)()
            wait(vm=(f"c{i+1}" if i < 6 else ["B0", "B1"]), lg=f"r{i}_3")
            e("s_barrier")
        else:
            wait(lg=f"r{i}_{st}")
        for ti in range(2):
            mfma1(0, i, st, ti)
            n = (len(rds) + (1 - ti)) // (2 - ti)
            for _ in range(n): rds.pop(0)()
            if st < 3:
                for _ in range(2 if st == 2 else 1):
                    if dq and budget > 0: dq.pop(0)(); budget -= 1
stamp()
def gcost(f): return getattr(f, 'cost', 8)
def gelu_instrs(k, pk, packed=True):
    a = acc(k); ps, ti = k >> 1, k & 1
    out = []
    for g in range(2):
        base = a + 8*g
        tt = vT[8*g: 8*g+8]
        seq = []
        if packed:
            for p in range(4): seq.append(f"v_pk_mul_f32 {vr(tt[2*p],2)}, {vr(base+2*p,2)}, {vr(base+2*p,2)}")
            for p in range(4): seq.append(f"v_pk_fma_f32 {vr(tt[2*p],2)}, {vr(tt[2*p],2)}, {vr(C1,2)}, {vr(C0,2)}")
            for p in range(4): seq.append(f"v_pk_mul_f32 {vr(tt[2*p],2)}, {vr(tt[2*p],2)}, {vr(base+2*p,2)}")
            for p in range(8): seq.append(f"v_exp_f32 v{tt[p]}, v{tt[p]}")
            for p in range(4): seq.append(f"v_pk_add_f32 {vr(tt[2*p],2)}, {vr(tt[2*p],2)}, {vr(ONE,2)}")
            for p in range(8): seq.append(f"v_rcp_f32 v{tt[p]}, v{tt[p]}")
            for p in range(4): seq.append(f"v_pk_mul_f32 {vr(tt[2*p],2)}, {vr(tt[2*p],2)}, {vr(base+2*p,2)}")
        else:
            for p in range(8): seq.append(f"v_mul_f32 v{tt[p]}, v{base+p}, v{base+p}")
            for p in range(8): seq.append(f"v_fmaak_f32 v{tt[p]}, v{tt[p]}, v{C1}, {fbits(c0)}")
            for p in range(8): seq.append(f"v_mul_f32 v{tt[p]}, v{tt[p]}, v{base+p}")
            for p in range(8): seq.append(f"v_exp_f32 v{tt[p]}, v{tt[p]}")
            for p in range(8): seq.append(f"v_add_f32 v{tt[p]}, 1.0, v{tt[p]}")
            for p in range(8): seq.append(f"v_rcp_f32 v{tt[p]}, v{tt[p]}")
            for p in range(8): seq.append(f"v_mul_f32 v{tt[p]}, v{tt[p]}, v{base+p}")
        for p in range(4): seq.append(f"v_cvt_pk_bf16_f32 v{pk+4*g+p}, v{tt[2*p]}, v{tt[2*p+1]}")
        for sx in seq:
            fn = lambda sx=sx: e(sx)
            fn.cost = 8 if sx.startswith(("v_exp", "v_rcp")) else 4
            out.append(fn)
        def st(g=g):
            off = (4*ps + 2*ti + g) * 1024
            if off >= 4096:
                e(f"s_add_u32 s{sT0}, s{sHoff}, 4096")
                e(f"buffer_store_dwordx4 {vr(pk+4*g,4)}, v{vH0}, {sr(SWS,4)}, s{sT0} offen offset:{off-4096} sc1")
            else:
                e(f"buffer_store_dwordx4 {vr(pk+4*g,4)}, v{vH0}, {sr(SWS,4)}, s{sHoff} offen offset:{off} sc1")
            VM.issue(f"hst{ps}")
        out.append(st)
    return out
def mk_wait_vm(u): return lambda: wait(vm=f"w2_{u}")
def mk_wait_lg(u): return lambda: wait(lg=f"w2r{u}")
def publish(ps):
    lab(f"L_nonp{ps}")
    e(f"v_cmp_ne_u32 vcc, 0, v{vNonP}")
    e(f"s_cbranch_vccnz L_nonp_ok{ps}")
    e(f"s_lshl_b32 s{sT0}, s{sM2p}, 3")
    e(f"s_and_b32 s{sT1}, s{sWave}, 1")
    e(f"s_lshl_b32 s{sT1}, s{sT1}, 2")
    e(f"s_add_u32 s{sT0}, s{sT0}, s{sT1}")
    e(f"buffer_load_dword v{vNonP}, v{vZero}, {sr(SDBG,4)}, s{sT0} offen sc1")
    e("s_waitcnt vmcnt(0)")
    e(f"s_branch L_nonp{ps}")
    lab(f"L_nonp_ok{ps}")
    e(f"buffer_store_dword v{vNonP}, v{vFlagP[ps]}, {sr(SWS,4)}, 0 offen sc1"); VM.issue("flag")
gA = gelu_instrs(0, PK, opt("pkA", 0)) + gelu_instrs(1, PK + 8, opt("pkA", 0))
GS, GE = opt("gs", 2), opt("ge", 56)
dq2 = w2_dma_ops(0) + w2_dma_ops(1) + w2_dma_ops(2)
NB = opt("nb", 24)
sB = [dq2.pop(0) for _ in range(NB)]
SS, SE = opt("ss", 0), opt("se", 54)
pos = {}
tot = sum(gcost(f) for f in gA); accu = 0
for f in gA:
    pos.setdefault(GS + int((GE - GS) * accu / tot), []).append(f); accu += gcost(f)
for n, f in enumerate(sB): pos.setdefault(SS + (SE - SS) * n // len(sB), []).append(f)
def pubA():
    wait(vm=["hst0", "non"])
    publish(0)
    lab("L_nonc")
    e(f"v_cmp_ne_u32 vcc, 0, v{vNonC}")
    e("s_cbranch_vccnz L_nonc_ok")
    e(f"s_lshl_b32 s{sT0}, s{sM2c}, 3")
    e(f"buffer_load_dwordx2 v[{vNonC}:{vNonC+1}], v{vZero}, {sr(SDBG,4)}, s{sT0} offen sc1")
    e("s_waitcnt vmcnt(0)")
    e("s_branch L_nonc")
    lab("L_nonc_ok")
    e(f"v_bfe_u32 v{vOld}, v{vLane}, 3, 1")
    e(f"v_cmp_eq_u32 vcc, 1, v{vOld}")
    e("s_nop 1")
    e(f"v_cndmask_b32 v{vNonS}, v{vNonC}, v{vNonC+1}, vcc")
m = 0
for i in range(7):
    for st in range(4):
        n2 = 4*i + st + 2
        rds = readB_ops(n2 // 4, n2 % 4) if n2 < 28 else []
        if n2 < 28 and n2 % 8 == 0:
            c = n2 // 4
            wait(vm=[f"B{c}", f"B{c+1}"] + (["B6"] if c == 4 else []))
            if c < 6: e("s_barrier")
        wait(lg=f"q{i}_{st}")
        for ti in range(2):
            mfma1(1, i, st, ti)
            for _ in range(2):
                if rds: rds.pop(0)()
            for f in pos.get(m, []): f()
            m += 1
stamp()
vPoll = 36
sH2 = 11
e(f"s_lshl_b32 s{sT0}, s{sM2c}, 1")
e(f"s_mul_i32 s{sT0}, s{sT0}, 112")
e(f"s_mul_i32 s{sT1}, s{sWave}, 28")
e(f"s_add_u32 s{sT0}, s{sT0}, s{sT1}")
e(f"s_lshl_b32 s{sH2}, s{sT0}, 10")
e(f"v_add_u32 v{vAW2c[0]}, 131072, v{vAW2[0]}")
e(f"v_add_u32 v{vAW2c[1]}, 131072, v{vAW2[1]}")
e("s_barrier")
dq2 += w2_dma_ops(3) + w2_dma_ops(4)
for _ in range(min(opt("nburst", 8), len(dq2))): dq2.pop(0)()
HB = 128
def h_ops(v):
    ops = []
    order = [(s, mi) for s in range(4) for mi in range(2)]
    if v == 6: order = [(s, 1) for s in range(4)] + [(s, 0) for s in range(4)]
    for n, (s, mi) in enumerate(order):
        def f(s=s, mi=mi, n=n):
            if n == 0:
                for hh in range(2):
                    hb(6 + hh, 2*v + hh)
                    e(f"s_lshl_b32 s{6+hh}, s{6+hh}, 11")
                    e(f"s_add_u32 s{6+hh}, s{6+hh}, s{sH2}")
            r = HB + 32*(v%4) + 8*s + 4*mi
            e(f"buffer_load_dwordx4 {vr(r,4)}, v{vG0 if mi==0 else vG1}, {sr(SWS,4)}, s{6 + s//2} offen offset:{(s%2)*1024} sc1"); VM.issue(f"h{v}_{s}" if v < 6 else f"h6_{s}_{mi}")
        ops.append(f)
    return ops
def mfma2(v, s, k):
    t, mi = k >> 1, k & 1
    r = HB + 32*(v%4) + 8*s + 4*mi
    c = "0" if (v == 0 and s == 0) else vr(acc(k),16)
    e(f"v_mfma_f32_32x32x16_bf16 {vr(acc(k),16)}, {ar(w2areg(v) + 8*s + 4*t, 4)}, {vr(r,4)}, {c}")
def check(tag, name, masked):
    wait(vm=tag)
    e(f"s_mov_b32 s{sT3}, 0")
    lab(f"L_{name}")
    e(f"v_cmp_ne_u32 vcc, v{vPoll}, v{vNonS}")
    if masked:
        e("s_nop 0")
        e(f"s_and_b64 vcc, vcc, {sr(sAmask,2)}")
        e(f"s_cbranch_scc0 L_{name}_go")
    else:
        e(f"s_cbranch_vccz L_{name}_go")
    e(f"buffer_load_dword v{vPoll}, v{vFlagC}, {sr(SWS,4)}, 0 offen sc1")
    e("s_waitcnt vmcnt(0)")
    e(f"s_add_u32 s{sT3}, s{sT3}, 1")
    e(f"s_cmp_lt_u32 s{sT3}, 0x40000")
    e(f"s_cbranch_scc1 L_{name}")
    lab(f"L_{name}_go")
gB = gelu_instrs(2, PK + 16) + gelu_instrs(3, PK + 24)
pos = {}
sG = [dq2.pop(0) for _ in range(min(opt("ng", 0), len(dq2)))]
for n, f in enumerate(sG): pos.setdefault(4 + (len(gB) - 8) * n // len(sG), []).append(f)
pos.setdefault(opt("pa", 100), []).append(pubA)
for n, f in enumerate(gB):
    f()
    for g in pos.get(n, []): g()
stamp()
post = list(dq2)
for u in (5, 6):
    post += [mk_wait_vm(u-5)] + w2_read_ops(u-5)
for u in (5, 6):
    post += [mk_wait_lg(u-5)] + w2_dma_ops(u)
PUBN = opt("pubn", 40)
for n, f in enumerate(post):
    f()
    if n == PUBN:
        wait(vm="hst1"); publish(1); stamp()
e(f"buffer_load_dword v{vPoll}, v{vFlagC}, {sr(SWS,4)}, 0 offen sc1"); VM.issue("poll1")
e(f"v_lshrrev_b32 v{t0}, 5, v{vLane}")
e(f"v_lshlrev_b32 v{t0}, 3, v{t0}")
e(f"s_lshr_b32 s{sT0}, s{sWave}, 1")
e(f"s_lshl_b32 s{sT0}, s{sT0}, 6")
e(f"s_lshl_b32 s{sT1}, s{sFtl}, 7")
e(f"s_add_u32 s{sT0}, s{sT0}, s{sT1}")
B2R = vT[8]
for q in range(4):
    e(f"buffer_load_dwordx2 {vr(B2R + 2*q, 2)}, v{t0}, {sr(SB2,4)}, s{sT0} offen offset:{16*q}"); VM.issue("b2")
wait(vm="w2_2")
for f in w2_read_ops(2): f()
check("poll1", "pollA", True)
stamp()
e(f"buffer_load_dword v{vPoll}, v{vFlagC}, {sr(SWS,4)}, 0 offen sc1"); VM.issue("poll2")
hq = []
for v in range(7): hq += h_ops(v)
NH0 = opt("nh0", 16)
for _ in range(NH0): hq.pop(0)()
for f in w2_read_ops(3): f()
vRW, vRR = vT[0], [vT[1], vT[2], vT[3]]
e(f"v_add_u32 v{vRW}, s{sStage}, v{vH0}")
for k in (1, 2, 3):
    e(f"s_xor_b32 s{sT0}, s{sWave}, {k}")
    e(f"s_lshl_b32 s{sT0}, s{sT0}, 13")
    e(f"s_add_u32 s{sT0}, s{sT0}, {[0,0,4096,32768][k]}")
    e(f"v_add_u32 v{vRR[k-1]}, s{sT0}, v{vH0}")
RWOFF = {1: 0, 2: 4096, 3: 32768}
checked = [False]
for v in range(6):
    trs = w2_read_ops(v + 4) if v + 4 < 7 else []
    wait(lg=f"w2r{v}")
    for s in range(4):
        wait(vm=f"h{v}_{s}")
        for k in range(4):
            mfma2(v, s, k)
            issued = 56 - len(hq)
            target = min(56, 16 + 8*v + 2*s + (k+1)//2)
            if hq and issued < target + opt("ahead", 0) and issued // 8 - 4 < v:
                if issued == 24 and not checked[0]:
                    check("poll2", "pollB", False); checked[0] = True
                    stamp()
                hq.pop(0)()
            if trs: trs.pop(0)()
assert not hq
stamp()
v = 6
wait(lg="w2r6")
def wr_ops(k):
    return [lambda q=q: e(f"ds_write_b128 v{vRW}, {vr(acc(k) + 4*q, 4)} offset:{RWOFF[k] + q*1024}") for q in range(4)]
BB = 224
fill = []
for q in range(4):
    for d in range(2):
        fill.append(f"v_lshlrev_b32 v{BB + 4*q + 2*d}, 16, v{B2R + 2*q + d}")
        fill.append(f"v_and_b32 v{BB + 4*q + 2*d + 1}, 0xffff0000, v{B2R + 2*q + d}")
vOA = vT[4]
fill += [f"v_and_b32 v{vOA}, 31, v{vLane}", f"v_lshrrev_b32 v{t5}, 5, v{vLane}", f"v_mul_u32_u24 v{vOA}, 896, v{vOA}", f"v_lshl_add_u32 v{vOA}, v{t5}, 4, v{vOA}"]
for s_ in range(4):
    wait(vm=f"h6_{s_}_1")
    mfma2(v, s_, 1); mfma2(v, s_, 3)
for sx in fill[:12]: e(sx)
w = wr_ops(1) + wr_ops(3)
for s_ in range(4):
    wait(vm=f"h6_{s_}_0")
    mfma2(v, s_, 2); w.pop(0)(); w.pop(0)()
for s_ in range(4):
    mfma2(v, s_, 0)
    for sx in fill[12+2*s_: 14+2*s_]: e(sx)
for f in wr_ops(2): f()
e(f"s_lshl_b32 s{sT0}, s{sM2c}, 1")
e(f"s_and_b32 s{sT1}, s{sWave}, 1")
e(f"s_add_u32 s{sT0}, s{sT0}, s{sT1}")
e(f"s_mul_i32 s{sT0}, s{sT0}, {32*896}")
e(f"s_lshl_b32 s{sT1}, s{sFtl}, 7")
e(f"s_add_u32 s{sT0}, s{sT0}, s{sT1}")
e(f"s_lshr_b32 s{sT1}, s{sWave}, 1")
e(f"s_lshl_b32 s{sT1}, s{sT1}, 6")
e(f"s_add_u32 s{sT0}, s{sT0}, s{sT1}")
e("s_waitcnt lgkmcnt(0)")
e("s_barrier")
RD = 128
for k in range(3):
    for q in range(4):
        e(f"ds_read_b128 {vr(RD + 16*k + 4*q, 4)}, v{vRR[k]} offset:{q*1024}")
OWN = acc(0)
for p in range(8): e(f"v_pk_add_f32 {vr(OWN+2*p,2)}, {vr(OWN+2*p,2)}, {vr(BB+2*p,2)}")
for k in range(3):
    e(f"s_waitcnt lgkmcnt({8 - 4*k})")
    for p in range(8): e(f"v_pk_add_f32 {vr(OWN+2*p,2)}, {vr(OWN+2*p,2)}, {vr(RD+16*k+2*p,2)}")
PO = 208
for p in range(8): e(f"v_cvt_pk_bf16_f32 v{PO+p}, v{OWN+2*p}, v{OWN+2*p+1}")
e("s_nop 1")
for qp in range(2):
    e(f"v_permlane32_swap_b32 v{PO+4*qp}, v{PO+4*qp+2}")
    e(f"v_permlane32_swap_b32 v{PO+4*qp+1}, v{PO+4*qp+3}")
for qp in range(2):
    e(f"buffer_store_dwordx4 {vr(PO+4*qp,4)}, v{vOA}, {sr(SOUT,4)}, s{sT0} offen offset:{32*qp}")
if STAMPS:
    stamp()
    e("s_waitcnt vmcnt(0)")
    stamp()
    e("s_memrealtime s[4:5]")
    e("s_waitcnt lgkmcnt(0)")
    e(f"s_lshl_b32 s6, s2, 2")
    e(f"s_add_u32 s6, s6, s{sWave}")
    e(f"s_lshl_b32 s6, s6, 6")
    e(f"s_add_u32 s6, s6, 0x8000000")
    e("v_mov_b32 v4, s100"); e("v_mov_b32 v5, s4")
    for k in range(14):
        if k < nstamp[0]:
            e(f"s_sub_u32 s7, s{74+2*k}, s98"); e(f"v_mov_b32 v{6+k}, s7")
        else: e(f"v_mov_b32 v{6+k}, 0")
    e("v_mov_b32 v20, s6")
    e(f"v_cmp_eq_u32 vcc, 0, v{vLane}")
    e("s_and_saveexec_b64 s[8:9], vcc")
    for k in range(4):
        e(f"buffer_store_dwordx4 v[{4+4*k}:{7+4*k}], v20, {sr(SWS,4)}, 0 offen offset:{16*k}")
lab("L_end")
e("s_endpgm")
lab("L_spare")
if PF:
    e(f"s_cmp_ge_u32 s2, {GRID}")
    e("s_cbranch_scc1 L_end2")
    e("s_load_dwordx2 s[4:5], s[0:1], 24")
    e("s_load_dwordx2 s[6:7], s[0:1], 8")
    e("v_and_b32 v1, 63, v0")
    e("v_lshrrev_b32 v2, 6, v0")
    e("s_and_b32 s8, s2, 7")
    e("v_readfirstlane_b32 s9, v2")
    e(f"s_sub_u32 s14, s2, {NWG}")
    e("s_lshr_b32 s10, s14, 3")
    e("s_mul_i32 s10, s10, 401408")
    e("s_mul_i32 s11, s8, 50176")
    e("s_lshl_b32 s12, s9, 13")
    e("s_add_u32 s11, s11, s12")
    e("v_lshlrev_b32 v3, 7, v1")
    e("s_mov_b32 s22, 1605632")
    e("s_mov_b32 s23, 0x20000")
    e("s_mov_b32 s26, 1605632")
    e("s_mov_b32 s27, 0x20000")
    e("s_lshl_b32 s13, s14, 2")
    e("s_add_u32 s13, s13, s9")
    e("s_mul_i32 s13, s13, 12544")
    e("v_min_u32 v6, 48, v1")
    e("v_lshlrev_b32 v6, 8, v6")
    e("s_waitcnt lgkmcnt(0)")
    e("s_mov_b32 s20, s4"); e("s_mov_b32 s21, s5")
    e("s_mov_b32 s24, s6"); e("s_mov_b32 s25, s7")
    if opt("pfw1", 1):
        e("buffer_load_dword v7, v6, s[24:27], s13 offen offset:128")
    for n in range(13):
        e("v_add_u32 v4, s11, v3")
        e("v_subrev_u32 v5, 401408, v4")
        e("v_min_u32 v4, v4, v5")
        e(f"buffer_load_dword v{8+n}, v4, s[20:23], s10 offen")
        e("s_add_u32 s11, s11, 32768")
        e("s_sub_u32 s12, s11, 401408")
        e("s_min_u32 s11, s11, s12")
    e("s_waitcnt vmcnt(0)")
    lab("L_end2")
e("s_endpgm")
kd = f""".section .rodata,"a"
.p2align 6
.amdhsa_kernel {NAME}
  .amdhsa_next_free_vgpr 512
  .amdhsa_next_free_sgpr 102
  .amdhsa_accum_offset 256
  .amdhsa_group_segment_fixed_size 0
  .amdhsa_kernarg_size 64
  .amdhsa_user_sgpr_count 2
  .amdhsa_user_sgpr_kernarg_segment_ptr 1
  .amdhsa_system_sgpr_workgroup_id_x 1
.end_amdhsa_kernel
"""
open(OUT, "w").write(top + "\n".join(L) + "\n" + kd)
```

```python
import sys, struct
OUT = sys.argv[1] if len(sys.argv) > 1 else "standalone__dense_activation_gelu__prompt.s"
STAMPS = int(sys.argv[2]) if len(sys.argv) > 2 else 0
OPT = dict(a.split("=") for a in sys.argv[3:])
def opt(k, d): return int(OPT.get(k, d))
NAME = "standalone__dense_activation_gelu__prompt_kernel"
NWG = 224
PF = opt("pf", 1)
GRID = 256 if PF else 224
FLAGS_OFF = 0x800000
FS = opt("fs", 2)
GSH = FS + (5 if FS == 2 else 4)
L = []
def e(s): L.append("  " + s)
def lab(s): L.append(s + ":")

class Ctr:
    def __init__(self, maxv): self.q = []; self.maxv = maxv
    def issue(self, tag): self.q.append(tag)
    def need(self, tags):
        if isinstance(tags, str): tags = [tags]
        last = -1
        for i, t in enumerate(self.q):
            if t in tags: last = i
        if last < 0: return None
        n = len(self.q) - 1 - last
        self.q = self.q[last+1:]
        return min(n, self.maxv)
    def drain(self): self.q = []
VM = Ctr(63); LG = Ctr(15)
def wait(vm=None, lg=None):
    parts = []
    if vm is not None:
        n = VM.need(vm)
        if n is not None: parts.append(f"vmcnt({n})")
    if lg is not None:
        n = LG.need(lg)
        if n is not None: parts.append(f"lgkmcnt({n})")
    if parts: e("s_waitcnt " + " ".join(parts))
nstamp = [0]
def stamp():
    if STAMPS:
        i = nstamp[0]; nstamp[0] += 1
        assert i < 12
        e(f"{'s_memrealtime' if STAMPS == 3 else 's_memtime'} s[{74+2*i}:{75+2*i}]")

SX, SW1, SW2, SWS, SOUT, SB1, SB2, SDBG = 20, 24, 28, 32, 36, 40, 44, 48
sWave, sXcd, sMtl, sFtl, sMt, sFt, sRot, sM2c = 52, 53, 54, 55, 56, 57, 58, 59
sT0, sT1, sT2, sT3 = 60, 61, 62, 63
sXbase, sWbase, sM0x, sM0w, sC = 64, 65, 66, 67, 68
sHoff, sW2base, sStage = 69, 70, 71
sAmask = 72
sM2p = 3
sPkA, sPkB = 4, 5
def hb(dst, n):
    e(f"s_bfe_u32 s{dst}, s{sPkA if n < 8 else sPkB}, {(4 << 16) | (4 * (n % 8))}")
vLane = 1
vXo = [2, 3]
vWo = 4
vW2o = 5
vW2q = [5, 60, 61, 62]
vAB = [6, 7, 8, 9]; vAB2 = [10, 11, 12, 13]
vAA = [14, 15]; vAA2 = [16, 17]; vAA3 = [18, 19]
vAW2 = [20, 21]; vAW2b = [22, 23]; vAW2c = [63, 37]
vH0 = 24
vG0, vG1 = 25, 26
vFlagP = [27, 28]; vFlagC = 29
vNonP = 30; vNonC = 32
vNonS = 31
vOld, vZero = 34, 35
vT = list(range(38, 60))
ACC = 64; BIAS = 128; FRAG = 192; PK = 224; RAW = 224
XF = 128
SLOT = 24576; W1B = 98304; BIASL = 155648
def acc(k): return ACC + 16 * k
def vr(a, n): return f"v[{a}:{a+n-1}]"
def ar(a, n): return f"a[{a}:{a+n-1}]"
def sr(a, n): return f"s[{a}:{a+n-1}]"
def fbits(x): return "0x%08x" % struct.unpack("<I", struct.pack("<f", x))[0]
t0, t1, t2, t3, t4, t5 = vT[0:6]

hdr = open("standalone__dense_activation_gelu__prompt.s.ref").read().split("; Override")[0]
top = hdr + f"; Fused MLP: phase 1 h=gelu(x@w1+b1) tiles -> d_ws (write-through) + flags, phase 2 out=h@w2+b2.\n; @launch grid=({GRID},1,1) block=(256,1,1) lds=163840\n"
top += f'.amdgcn_target "amdgcn-amd-amdhsa--gfx950"\n.text\n.globl {NAME}\n.p2align 8\n.type {NAME},@function\n{NAME}:\n'

if STAMPS:
    e("s_memrealtime s[100:101]")
    e(f"{'s_memrealtime' if STAMPS == 3 else 's_memtime'} s[98:99]")
e(f"s_cmp_ge_u32 s2, {NWG}")
e("s_cbranch_scc1 L_spare")
e("s_load_dwordx16 s[4:19], s[0:1], 0")
e(f"v_and_b32 v{vLane}, 63, v0")
e(f"v_lshrrev_b32 v{t0}, 6, v0")
e(f"s_and_b32 s{sXcd}, s2, 7")
e(f"v_readfirstlane_b32 s{sWave}, v{t0}")
e("s_nop 3")
if opt("cpf", 1):
    NL = opt("cpfn", 4)
    e(f"s_cmp_lg_u32 s{sWave}, 1")
    e("s_cbranch_scc1 L_nocpf")
    e(f"s_getpc_b64 s[{sT0}:{sT1}]")
    lab("L_pc")
    e(f"s_lshr_b32 s{sT2}, s2, 3")
    e(f"s_mul_i32 s{sT2}, s{sT2}, {NL}")
    e(f"v_min_u32 v{t4}, {NL-1}, v{vLane}")
    e(f"v_add_lshl_u32 v{t4}, v{t4}, s{sT2}, 7")
    e(f"v_min_u32 v{t4}, L_end-L_pc, v{t4}")
    e(f"global_load_dword v37, v{t4}, s[{sT0}:{sT1}]")
    lab("L_nocpf")
e(f"s_lshr_b32 s{sT0}, s2, 3")
e(f"s_mul_i32 s{sMtl}, s{sT0}, 37")
e(f"s_lshr_b32 s{sMtl}, s{sMtl}, 8")
e(f"s_mul_i32 s{sT1}, s{sMtl}, 7")
e(f"s_sub_u32 s{sFtl}, s{sT0}, s{sT1}")
e(f"s_lshr_b32 s{sMt}, s{sXcd}, 1")
e(f"s_lshl_b32 s{sMt}, s{sMt}, 2")
e(f"s_add_u32 s{sMt}, s{sMt}, s{sMtl}")
e(f"s_and_b32 s{sFt}, s{sXcd}, 1")
e(f"s_mul_i32 s{sFt}, s{sFt}, 7")
e(f"s_add_u32 s{sFt}, s{sFt}, s{sFtl}")
e(f"s_lshl_b32 s{sM2c}, s{sXcd}, 2")
e(f"s_add_u32 s{sM2c}, s{sM2c}, s{sMtl}")
e(f"s_lshl_b32 s{sRot}, s{sMtl}, 1")
e(f"s_add_u32 s{sRot}, s{sRot}, s{sFtl}")
e(f"s_add_u32 s{sRot}, s{sRot}, s{sXcd}")
e(f"s_mul_i32 s{sT0}, s{sRot}, 37")
e(f"s_lshr_b32 s{sT0}, s{sT0}, 8")
e(f"s_mul_i32 s{sT0}, s{sT0}, 7")
e(f"s_sub_u32 s{sRot}, s{sRot}, s{sT0}")
e(f"v_lshrrev_b32 v{t0}, 3, v{vLane}")
e(f"v_and_b32 v{t1}, 7, v{vLane}")
e(f"v_lshrrev_b32 v{t2}, 1, v{t0}")
e(f"v_xor_b32 v{t3}, v{t1}, v{t2}")
e(f"v_xor_b32 v{t4}, 4, v{t3}")
e(f"v_mul_u32_u24 v{t5}, 896, v{t0}")
e(f"v_lshl_add_u32 v{vXo[0]}, v{t3}, 4, v{t5}")
e(f"v_lshl_add_u32 v{vXo[1]}, v{t4}, 4, v{t5}")
e(f"v_add_u32 v{vXo[1]}, {8*896}, v{vXo[1]}")
e(f"v_and_b32 v{t2}, 1, v{t2}")
e(f"v_lshlrev_b32 v{t2}, 2, v{t2}")
e(f"v_xor_b32 v{t2}, v{t1}, v{t2}")
e(f"v_lshl_add_u32 v{vW2o}, v{t2}, 4, v{t5}")
for q in range(1, 4): e(f"v_add_u32 v{vW2q[q]}, {q*(7168-1024)}, v{vW2o}")
e(f"v_mul_u32_u24 v{t5}, 3584, v{t0}")
e(f"v_lshl_add_u32 v{vWo}, v{t2}, 4, v{t5}")
e(f"s_lshl_b32 s{sT0}, s{sMt}, 2")
e(f"s_add_u32 s{sT0}, s{sT0}, s{sWave}")
e(f"s_mul_i32 s{sXbase}, s{sT0}, 28672")
e(f"s_mul_i32 s{sWbase}, s{sWave}, {16*3584}")
e(f"s_lshl_b32 s{sT0}, s{sFt}, 8")
e(f"s_add_u32 s{sWbase}, s{sWbase}, s{sT0}")
e(f"s_lshl_b32 s{sM0x}, s{sWave}, 12")
e(f"s_lshl_b32 s{sM0w}, s{sWave}, 11")
e(f"s_mov_b32 s{sC}, s{sRot}")
for d, n in ((SX, 1835008), (SW1, 1605632), (SW2, 1605632), (SWS, 0x10000000), (SOUT, 1835008), (SB1, 3584), (SB2, 896), (SDBG, 256)):
    e(f"s_mov_b32 s{d+2}, {n}"); e(f"s_mov_b32 s{d+3}, 0x20000")
e(f"v_and_b32 v{t0}, 31, v{vLane}")
e(f"v_lshrrev_b32 v{t1}, 5, v{vLane}")
e(f"v_bfe_u32 v{t2}, v{vLane}, 1, 3")
e(f"v_xor_b32 v{t2}, v{t2}, v{t1}")
e(f"v_lshlrev_b32 v{t0}, 7, v{t0}")
e(f"v_add_u32 v{t0}, s{sM0x}, v{t0}")
for s in range(4):
    e(f"v_xor_b32 v{t3}, {2*s}, v{t2}")
    e(f"v_lshl_add_u32 v{vAB[s]}, v{t3}, 4, v{t0}")
    e(f"v_add_u32 v{vAB2[s]}, {2*SLOT}, v{vAB[s]}")
e(f"v_bfe_u32 v{t0}, v{vLane}, 2, 2")
e(f"v_and_b32 v{t2}, 3, v{vLane}")
e(f"v_bfe_u32 v{t3}, v{vLane}, 4, 1")
e(f"v_lshlrev_b32 v{t2}, 3, v{t2}")
e(f"v_lshl_add_u32 v{t2}, v{t3}, 5, v{t2}")
e(f"v_lshl_add_u32 v{t3}, v{t1}, 3, v{t0}")
e(f"v_lshl_add_u32 v{t3}, v{t3}, 7, v{t2}")
e(f"v_lshrrev_b32 v{t4}, 1, v{t0}")
e(f"v_lshl_add_u32 v{t5}, v{t4}, 6, v{t3}")
e(f"v_add_u32 v{vAA[0]}, 16384, v{t5}")
e(f"v_add_u32 v{vAA2[0]}, {16384 + 2*SLOT}, v{t5}")
e(f"v_add_u32 v{vAA3[0]}, {W1B}, v{t5}")
e(f"v_xor_b32 v{t5}, 64, v{t5}")
e(f"v_add_u32 v{vAA[1]}, 16384, v{t5}")
e(f"v_add_u32 v{vAA2[1]}, {16384 + 2*SLOT}, v{t5}")
e(f"v_add_u32 v{vAA3[1]}, {W1B}, v{t5}")
e(f"s_lshl_b32 s{sStage}, s{sWave}, 13")
e(f"v_lshl_add_u32 v{t3}, v{t1}, 2, v{t0}")
e(f"v_lshl_add_u32 v{t3}, v{t3}, 7, v{t2}")
e(f"v_add_u32 v{t3}, s{sStage}, v{t3}")
e(f"s_lshr_b32 s{sT0}, s{sWave}, 1")
e(f"v_xor_b32 v{t4}, s{sT0}, v{t4}")
e(f"v_lshl_add_u32 v{vAW2[0]}, v{t4}, 6, v{t3}")
e(f"v_xor_b32 v{vAW2[1]}, 64, v{vAW2[0]}")
e(f"v_add_u32 v{vAW2b[0]}, 65536, v{vAW2[0]}")
e(f"v_add_u32 v{vAW2b[1]}, 65536, v{vAW2[1]}")
e(f"v_lshlrev_b32 v{vH0}, 4, v{vLane}")
e(f"s_and_b32 s{sT0}, s{sWave}, 1")
e(f"s_mul_i32 s{sT0}, s{sT0}, 114688")
e(f"v_add_u32 v{vG0}, s{sT0}, v{vH0}")
e(f"s_sub_u32 s{sT0}, 114688, s{sT0}")
e(f"v_add_u32 v{vG1}, s{sT0}, v{vH0}")
e(f"s_mul_i32 s{sW2base}, s{sWave}, {448*896}")
e(f"s_lshl_b32 s{sT0}, s{sFtl}, 7")
e(f"s_add_u32 s{sW2base}, s{sW2base}, s{sT0}")
e(f"v_mov_b32 v{vZero}, 0")
e(f"v_lshlrev_b32 v{t0}, 3, v{t1}")
e(f"v_add_u32 v{t0}, {BIASL}, v{t0}")
e(f"v_bfe_u32 v{t2}, v{vLane}, 3, 2")
e(f"v_and_b32 v{t3}, 7, v{vLane}")
e(f"v_lshlrev_b32 v{t2}, {GSH}, v{t2}")
e(f"v_lshl_add_u32 v{t2}, v{t3}, {FS}, v{t2}")
e(f"v_lshl_add_u32 v{t2}, v{t1}, {FS+3}, v{t2}")
e(f"s_lshl_b32 s{sT1}, s{sM2c}, {GSH+2}")
e(f"s_add_u32 s{sT1}, s{sT1}, {FLAGS_OFF}")
e("s_waitcnt lgkmcnt(0)")
def srd(d, p):
    e(f"s_mov_b32 s{d}, s{p}"); e(f"s_mov_b32 s{d+1}, s{p+1}")
srd(SX, 4); srd(SW1, 6)
if not opt("dbg2", 0): stamp()

def adv():
    e(f"s_add_u32 s{sC}, s{sC}, 1")
    e(f"s_cmp_ge_u32 s{sC}, 7")
    e(f"s_cselect_b32 s{sC}, 0, s{sC}")
def dmaA_ops(i):
    slot = (i % 4) * SLOT
    ops = []
    def setup():
        e(f"s_lshl_b32 s{sT2}, s{sC}, 7")
        e(f"s_add_u32 s{sT2}, s{sT2}, s{sXbase}")
        e(f"s_mul_i32 s{sT3}, s{sC}, {64*3584}")
        e(f"s_add_u32 s{sT3}, s{sT3}, s{sWbase}")
        adv()
    def fx(q):
        def f():
            e(f"s_add_u32 m0, s{sM0x}, {slot + q*1024}")
            if q == 0: setup()
            elif q == 2: e(f"s_add_u32 s{sT2}, s{sT2}, {16*896}")
            else: e("s_nop 0")
            e(f"buffer_load_dwordx4 v{vXo[q&1]}, {sr(SX,4)}, s{sT2} offen lds"); VM.issue(f"c{i}")
        return f
    def fw(q):
        def f():
            e(f"s_add_u32 m0, s{sM0w}, {slot + 16384 + q*1024}")
            if q: e(f"s_add_u32 s{sT3}, s{sT3}, {8*3584}")
            else: e("s_nop 0")
            e(f"buffer_load_dwordx4 v{vWo}, {sr(SW1,4)}, s{sT3} offen lds"); VM.issue(f"c{i}")
        return f
    return [fx(0), fw(0), fx(1), fx(2), fw(1), fx(3)] if i < 7 else []
def dmaB_ops(i):
    def fw(q):
        def f():
            e(f"s_add_u32 m0, s{sM0w}, {W1B + i*8192 + q*1024}")
            if q: e(f"s_add_u32 s{sT3}, s{sT3}, {8*3584}")
            else:
                e(f"s_mul_i32 s{sT3}, s{sC}, {64*3584}")
                e(f"s_add_u32 s{sT3}, s{sT3}, s{sWbase}")
                e(f"s_add_u32 s{sT3}, s{sT3}, 128")
                adv()
            e(f"buffer_load_dwordx4 v{vWo}, {sr(SW1,4)}, s{sT3} offen lds"); VM.issue(f"B{i}")
        return f
    return [fw(0), fw(1)]

for f in dmaA_ops(0): f()
srd(SB1, 8)
e(f"s_cmp_lg_u32 s{sWave}, 2")
e("s_cbranch_scc1 L_nob1")
e(f"s_mov_b32 m0, {BIASL}")
e(f"s_lshl_b32 s{sT0}, s{sFt}, 8")
e(f"v_lshlrev_b32 v{t4}, 2, v{vLane}")
e(f"buffer_load_dword v{t4}, {sr(SB1,4)}, s{sT0} offen lds")
lab("L_nob1")
srd(SWS, 18); srd(SDBG, 16); srd(SW2, 10); srd(SOUT, 14); srd(SB2, 12)
e(f"s_or_b32 s{sT0}, s{sFtl}, s{sWave}")
e(f"s_cmp_lg_u32 s{sT0}, 0")
e("s_cbranch_scc1 L_noleader0")
e(f"buffer_load_dword v{vOld}, v{t2}, {sr(SWS,4)}, s{sT1} offen sc1")
lab("L_noleader0")
for f in dmaA_ops(1): f()
e(f"v_and_b32 v{t3}, 7, v{vLane}")
e(f"v_min_u32 v{t3}, 6, v{t3}")
e(f"v_bfe_u32 v{t4}, v{vLane}, 3, 1")
e(f"v_lshlrev_b32 v{t3}, {FS}, v{t3}")
e(f"v_lshl_add_u32 v{t3}, v{t4}, {FS+3}, v{t3}")
e(f"s_lshl_b32 s{sT0}, s{sM2c}, 2")
e(f"s_add_u32 s{sT0}, s{sT0}, s{sWave}")
e(f"s_lshl_b32 s{sT0}, s{sT0}, {GSH}")
e(f"s_add_u32 s{sT0}, s{sT0}, {FLAGS_OFF}")
e(f"v_add_u32 v{vFlagC}, s{sT0}, v{t3}")
e(f"s_and_b32 s11, s{sWave}, 1")
e(f"s_cmp_eq_u32 s11, 0")
e(f"s_mov_b32 s16, 0x2a2a2a2a")
e(f"s_cselect_b32 s{sAmask}, 0x55555555, s16")
e(f"s_mov_b32 s{sAmask+1}, s{sAmask}")
e(f"s_lshl_b32 s17, s11, 1")
e(f"s_sub_u32 s12, 8, s17")
e(f"s_add_u32 s13, s17, 6")
e(f"s_sub_u32 s18, 2, s17")
e(f"s_mov_b32 s{sPkA}, 0"); e(f"s_mov_b32 s{sPkB}, 0")
def mod1(dst, n):
    e(f"s_sub_u32 s16, s{dst}, s{n}"); e(f"s_cmp_ge_u32 s{dst}, s{n}"); e(f"s_cselect_b32 s{dst}, s16, s{dst}")
e(f"s_mov_b32 s14, s{sRot}"); mod1(14, 12)
e(f"s_mov_b32 s15, s{sRot}"); mod1(15, 13)
def elem(idx, base):
    e(f"s_lshr_b32 s19, s{idx}, 1"); e(f"s_lshl_b32 s19, s19, 2"); e(f"s_and_b32 s16, s{idx}, 1")
    e(f"s_add_u32 s19, s19, s16"); e(f"s_add_u32 s19, s19, s{base}")
for n in range(14):
    dstp = sPkA if n < 8 else sPkB
    sh = 4 * (n % 8)
    if n < 6:
        elem(14, 17)
        e(f"s_add_u32 s14, s14, 1"); mod1(14, 12)
    elif n >= 8:
        elem(15, 18)
        e(f"s_add_u32 s15, s15, 1"); mod1(15, 13)
    else:
        elem(14, 17); e(f"s_mov_b32 s10, s19")
        elem(15, 18)
        e(f"s_cmp_eq_u32 s11, 0"); e(f"s_cselect_b32 s19, s10, s19")
        e(f"s_add_u32 s14, s14, 1"); mod1(14, 12)
        e(f"s_add_u32 s15, s15, s11"); mod1(15, 13)
    e(f"s_lshl_b32 s19, s19, {sh}")
    e(f"s_or_b32 s{dstp}, s{dstp}, s19")
e(f"s_lshr_b32 s{sT0}, s{sWave}, 1")
e(f"s_lshl_b32 s{sT1}, s{sMt}, 1")
e(f"s_add_u32 s{sM2p}, s{sT0}, s{sT1}")
for ps in range(2):
    e(f"s_lshl_b32 s12, s{sFt}, 1")
    if ps: e(f"s_add_u32 s12, s12, 1")
    e(f"s_mul_i32 s13, s12, 37")
    e(f"s_lshr_b32 s13, s13, 8")
    e(f"s_mul_i32 s14, s13, 7")
    e(f"s_sub_u32 s12, s12, s14")
    e(f"s_lshl_b32 s14, s{sM2p}, 2")
    e(f"s_add_u32 s14, s14, s13")
    e(f"s_lshl_b32 s14, s14, {GSH}")
    e(f"s_lshl_b32 s12, s12, {FS}")
    e(f"s_add_u32 s14, s14, s12")
    e(f"s_lshl_b32 s12, s11, {FS+3}")
    e(f"s_add_u32 s14, s14, s12")
    e(f"s_add_u32 s14, s14, {FLAGS_OFF}")
    if opt("fl", 0):
        e(f"v_lshlrev_b32 v{vFlagP[ps]}, 2, v{vLane}")
        e(f"v_add_u32 v{vFlagP[ps]}, s14, v{vFlagP[ps]}")
    else:
        e(f"v_mov_b32 v{vFlagP[ps]}, s14")
e(f"s_lshl_b32 s{sT0}, s{sMt}, 2")
e(f"s_add_u32 s{sT0}, s{sT0}, s{sWave}")
e(f"s_mul_i32 s{sT0}, s{sT0}, 112")
e(f"s_lshl_b32 s{sT1}, s{sFt}, 3")
e(f"s_add_u32 s{sT0}, s{sT0}, s{sT1}")
e(f"s_lshl_b32 s{sHoff}, s{sT0}, 10")
C0, C1, ONE = vT[16], vT[18], vT[20]
c0 = -2.0 * 0.7978845608028654 * 1.4426950408889634
c1 = c0 * 0.044715
for r, val in ((C0, c0), (C1, c1), (ONE, 1.0)):
    e(f"v_mov_b32 v{r}, {fbits(val)}"); e(f"v_mov_b32 v{r+1}, {fbits(val)}")
if opt("pre3", 1):
    for f in dmaA_ops(2): f()
wait(vm="c0")
if not opt("dbg2", 0): stamp()
e(f"s_or_b32 s{sT0}, s{sFtl}, s{sWave}")
e(f"s_cmp_lg_u32 s{sT0}, 0")
e("s_cbranch_scc1 L_noleader")
e(f"v_and_b32 v{t1}, 31, v{vLane}")
e(f"v_lshrrev_b32 v{t2}, v{t1}, v{vOld}")
e(f"v_and_b32 v{t2}, 1, v{t2}")
e(f"v_cmp_eq_u32 vcc, 0, v{t2}")
e("s_nop 4")
e(f"s_or_b32 s{sT0}, vcc_lo, 0x80808080")
e(f"s_or_b32 s{sT1}, vcc_hi, 0x80808080")
e(f"v_mov_b32 v{t2}, s{sT0}")
e(f"v_mov_b32 v{t3}, s{sT1}")
e(f"s_lshl_b32 s{sT1}, s{sM2c}, 3")
e("s_mov_b64 exec, 1")
e(f"buffer_store_dwordx2 v[{t2}:{t3}], v{vZero}, {sr(SDBG,4)}, s{sT1} offen sc1")
e("s_mov_b64 exec, -1")
lab("L_noleader")
e("s_barrier")

def readA_ops(i, s):
    slot = i % 4
    fb = FRAG + 8 * s
    aA = vAA if slot < 2 else vAA2
    aB = vAB if slot < 2 else vAB2
    so = (slot % 2) * SLOT
    def rb():
        e(f"ds_read_b128 {ar(XF + 16*i + 4*s, 4)}, v{aB[s]} offset:{so}"); LG.issue(f"r{i}_{s}")
    def ra(ti, e2):
        def f(): e(f"ds_read_b64_tr_b16 {vr(fb + 4*ti + 2*e2, 2)}, v{aA[ti]} offset:{so + s*2048 + e2*512}"); LG.issue(f"r{i}_{s}")
        return f
    return [rb, ra(0,0), ra(0,1), ra(1,0), ra(1,1)]
def readB_ops(i, s):
    fb = FRAG + 8 * s
    def ra(ti, e2):
        def f(): e(f"ds_read_b64_tr_b16 {vr(fb + 4*ti + 2*e2, 2)}, v{vAA3[ti]} offset:{i*8192 + s*2048 + e2*512}"); LG.issue(f"q{i}_{s}")
        return f
    return [ra(0,0), ra(0,1), ra(1,0), ra(1,1)]
def mfma1(ps, i, s, ti):
    k = 2*ps + ti
    fb = FRAG + 8 * s
    c = vr(BIAS + 16*k, 16) if (i == 0 and s == 0) else vr(acc(k), 16)
    e(f"v_mfma_f32_32x32x16_bf16 {vr(acc(k),16)}, {vr(fb+4*ti,4)}, {ar(XF + 16*i + 4*s, 4)}, {c}")

W2X = [0, 1, 2, 3, 4, 0, 1]
def w2areg(v): return 32*v if v < 4 else XF + 32*(v-4)
def w2_dma_ops(v):
    ops = []
    X = W2X[v]
    for q in range(8):
        def f(q=q):
            if q == 0:
                e(f"s_add_u32 m0, s{sStage}, {X*32768}")
                hb(sT2, 2*v)
                e(f"s_mul_i32 s{sT2}, s{sT2}, {32*896}")
                e(f"s_add_u32 s{sT2}, s{sT2}, s{sW2base}")
            if q == 4:
                e(f"s_add_u32 m0, s{sStage}, {X*32768 + 4096}")
                hb(sT2, 2*v + 1)
                e(f"s_mul_i32 s{sT2}, s{sT2}, {32*896}")
                e(f"s_add_u32 s{sT2}, s{sT2}, s{sW2base}")
            e(f"buffer_load_dwordx4 v{vW2q[q%4]}, {sr(SW2,4)}, s{sT2} offen offset:{(q%4)*1024} lds"); VM.issue(f"w2_{v}")
        ops.append(f)
    return ops
def w2_read_ops(v):
    ops = []
    X = W2X[v]
    base = vAW2 if X <= 1 else (vAW2b if X <= 3 else vAW2c)
    off = (X % 2) * 32768
    for s in range(4):
        for t in range(2):
            for e2 in range(2):
                def f(s=s, t=t, e2=e2):
                    e(f"ds_read_b64_tr_b16 {ar(w2areg(v) + 8*s + 4*t + 2*e2, 2)}, v{base[t]} offset:{off + s*2048 + e2*1024}"); LG.issue(f"w2r{v}")
                ops.append(f)
    return ops

for k in range(4):
    for q in range(4):
        e(f"ds_read_b64 {vr(RAW + 8*(k%2) + 2*q + 16*(k//2), 2)}, v{t0} offset:{64*k + 16*q}"); LG.issue(f"b1_{k//2}")
def unpack_bias(half):
    for k in (2*half, 2*half+1):
        for q in range(4):
            for d in range(2):
                src = RAW + 8*(k%2) + 2*q + 16*(k//2) + d
                e(f"v_lshlrev_b32 v{BIAS + 16*k + 4*q + 2*d}, 16, v{src}")
                e(f"v_and_b32 v{BIAS + 16*k + 4*q + 2*d + 1}, 0xffff0000, v{src}")
wait(lg="b1_0")
for f in readA_ops(0, 0): f()
unpack_bias(0)
for f in readA_ops(0, 1): f()
dq = []
if not opt("pre3", 1): dq += dmaA_ops(2)
for i in range(7):
    if i + 3 < 7: dq += dmaA_ops(i + 3)
    if i == 3:
        dq.append(lambda: e(f"s_mov_b32 s{sC}, s{sRot}"))
        for b in range(7): dq += dmaB_ops(b)
    nper = opt("dper", 8)
    budget = nper
    for st in range(4):
        rds = []
        if st < 2: rds = readA_ops(i, st + 2)
        elif st == 3:
            if i < 6: rds = readA_ops(i + 1, 0) + readA_ops(i + 1, 1)
            else: rds = readB_ops(0, 0) + readB_ops(0, 1)
        if st == 3:
            if i == 0:
                wait(lg="b1_1"); unpack_bias(1)
            if i == 4:
                e(f"s_lshl_b32 s{sT0}, s{sM2p}, 3")
                e(f"s_and_b32 s{sT1}, s{sWave}, 1")
                e(f"s_lshl_b32 s{sT1}, s{sT1}, 2")
                e(f"s_add_u32 s{sT0}, s{sT0}, s{sT1}")
                e(f"s_lshl_b32 s{sT1}, s{sM2c}, 3")
                e(f"buffer_load_dword v{vNonP}, v{vZero}, {sr(SDBG,4)}, s{sT0} offen sc1"); VM.issue("non")
                e(f"buffer_load_dwordx2 v[{vNonC}:{vNonC+1}], v{vZero}, {sr(SDBG,4)}, s{sT1} offen sc1"); VM.issue("non")
            if i == opt("b2i", 1) and opt("b2e", 1):
                e(f"v_lshrrev_b32 v{t1}, 5, v{vLane}")
                e(f"v_lshlrev_b32 v{t1}, 3, v{t1}")
                e(f"s_lshr_b32 s{sT0}, s{sWave}, 1")
                e(f"s_lshl_b32 s{sT0}, s{sT0}, 6")
                e(f"s_lshl_b32 s{sT1}, s{sFtl}, 7")
                e(f"s_add_u32 s{sT0}, s{sT0}, s{sT1}")
                for q in range(4):
                    e(f"buffer_load_dwordx2 {ar(240 + 2*q, 2)}, v{t1}, {sr(SB2,4)}, s{sT0} offen offset:{16*q}"); VM.issue("b2")
            if i == 6:
                while dq: dq.pop(0)()
            wait(vm=(f"c{i+1}" if i < 6 else ["B0", "B1"]), lg=f"r{i}_3")
            e("s_barrier")
        else:
            wait(lg=f"r{i}_{st}")
        for ti in range(2):
            mfma1(0, i, st, ti)
            n = (len(rds) + (1 - ti)) // (2 - ti)
            for _ in range(n): rds.pop(0)()
            if st < 3:
                for _ in range(2 if st == 2 else 1):
                    if dq and budget > 0: dq.pop(0)(); budget -= 1
if not opt("dbg2", 0): stamp()
def gcost(f): return getattr(f, 'cost', 8)
def gelu_instrs(k, pk, packed=True):
    a = acc(k); ps, ti = k >> 1, k & 1
    out = []
    for g in range(2):
        base = a + 8*g
        tt = vT[8*g: 8*g+8]
        seq = []
        if packed:
            for p in range(4): seq.append(f"v_pk_mul_f32 {vr(tt[2*p],2)}, {vr(base+2*p,2)}, {vr(base+2*p,2)}")
            for p in range(4): seq.append(f"v_pk_fma_f32 {vr(tt[2*p],2)}, {vr(tt[2*p],2)}, {vr(C1,2)}, {vr(C0,2)}")
            for p in range(4): seq.append(f"v_pk_mul_f32 {vr(tt[2*p],2)}, {vr(tt[2*p],2)}, {vr(base+2*p,2)}")
            for p in range(8): seq.append(f"v_exp_f32 v{tt[p]}, v{tt[p]}")
            for p in range(4): seq.append(f"v_pk_add_f32 {vr(tt[2*p],2)}, {vr(tt[2*p],2)}, {vr(ONE,2)}")
            for p in range(8): seq.append(f"v_rcp_f32 v{tt[p]}, v{tt[p]}")
            for p in range(4): seq.append(f"v_pk_mul_f32 {vr(tt[2*p],2)}, {vr(tt[2*p],2)}, {vr(base+2*p,2)}")
        else:
            for p in range(8): seq.append(f"v_mul_f32 v{tt[p]}, v{base+p}, v{base+p}")
            for p in range(8): seq.append(f"v_fmaak_f32 v{tt[p]}, v{tt[p]}, v{C1}, {fbits(c0)}")
            for p in range(8): seq.append(f"v_mul_f32 v{tt[p]}, v{tt[p]}, v{base+p}")
            for p in range(8): seq.append(f"v_exp_f32 v{tt[p]}, v{tt[p]}")
            for p in range(8): seq.append(f"v_add_f32 v{tt[p]}, 1.0, v{tt[p]}")
            for p in range(8): seq.append(f"v_rcp_f32 v{tt[p]}, v{tt[p]}")
            for p in range(8): seq.append(f"v_mul_f32 v{tt[p]}, v{tt[p]}, v{base+p}")
        for p in range(4): seq.append(f"v_cvt_pk_bf16_f32 v{pk+4*g+p}, v{tt[2*p]}, v{tt[2*p+1]}")
        for sx in seq:
            fn = lambda sx=sx: e(sx)
            fn.cost = 8 if sx.startswith(("v_exp", "v_rcp")) else 4
            out.append(fn)
        def st(g=g):
            off = (4*ps + 2*ti + g) * 1024
            if off >= 4096:
                e(f"s_add_u32 s{sT0}, s{sHoff}, 4096")
                e(f"buffer_store_dwordx4 {vr(pk+4*g,4)}, v{vH0}, {sr(SWS,4)}, s{sT0} offen offset:{off-4096} sc1")
            else:
                e(f"buffer_store_dwordx4 {vr(pk+4*g,4)}, v{vH0}, {sr(SWS,4)}, s{sHoff} offen offset:{off} sc1")
            VM.issue(f"hst{ps}")
        out.append(st)
    return out
def mk_wait_vm(u): return lambda: wait(vm=f"w2_{u}")
def mk_wait_lg(u): return lambda: wait(lg=f"w2r{u}")
def publish(ps):
    e(f"s_mov_b32 s{sT3}, 0")
    lab(f"L_nonp{ps}")
    e(f"v_cmp_ne_u32 vcc, 0, v{vNonP}")
    e(f"s_cbranch_vccnz L_nonp_ok{ps}")
    e(f"s_lshl_b32 s{sT0}, s{sM2p}, 3")
    e(f"s_and_b32 s{sT1}, s{sWave}, 1")
    e(f"s_lshl_b32 s{sT1}, s{sT1}, 2")
    e(f"s_add_u32 s{sT0}, s{sT0}, s{sT1}")
    e(f"buffer_load_dword v{vNonP}, v{vZero}, {sr(SDBG,4)}, s{sT0} offen sc1")
    e("s_waitcnt vmcnt(0)")
    e(f"s_add_u32 s{sT3}, s{sT3}, 1")
    e(f"s_cmp_lt_u32 s{sT3}, 0x40000")
    e(f"s_cbranch_scc1 L_nonp{ps}")
    lab(f"L_nonp_ok{ps}")
    if opt("fl", 0): e(f"s_mov_b64 exec, {hex((1 << ((1 << FS)//4)) - 1)}")
    elif opt("one", 1): e("s_mov_b64 exec, 1")
    e(f"buffer_store_dword v{vNonP}, v{vFlagP[ps]}, {sr(SWS,4)}, 0 offen sc1"); VM.issue("flag")
    if opt("one", 1): e("s_mov_b64 exec, -1")
gA = gelu_instrs(0, PK, opt("pkA", 0)) + gelu_instrs(1, PK + 8, opt("pkA", 0))
GS, GE = opt("gs", 2), opt("ge", 56)
dq2 = w2_dma_ops(0) + w2_dma_ops(1) + w2_dma_ops(2)
NB = opt("nb", 24)
sB = [dq2.pop(0) for _ in range(NB)]
SS, SE = opt("ss", 0), opt("se", 54)
pos = {}
tot = sum(gcost(f) for f in gA); accu = 0
for f in gA:
    pos.setdefault(GS + int((GE - GS) * accu / tot), []).append(f); accu += gcost(f)
for n, f in enumerate(sB): pos.setdefault(SS + (SE - SS) * n // len(sB), []).append(f)
def pubA():
    wait(vm=["hst0", "non"])
    publish(0)
    e(f"s_mov_b32 s{sT3}, 0")
    lab("L_nonc")
    e(f"v_min_u32 v{vOld}, v{vNonC}, v{vNonC+1}")
    e(f"v_cmp_ne_u32 vcc, 0, v{vOld}")
    e("s_cbranch_vccnz L_nonc_ok")
    e(f"s_lshl_b32 s{sT0}, s{sM2c}, 3")
    e(f"buffer_load_dwordx2 v[{vNonC}:{vNonC+1}], v{vZero}, {sr(SDBG,4)}, s{sT0} offen sc1")
    e("s_waitcnt vmcnt(0)")
    e(f"s_add_u32 s{sT3}, s{sT3}, 1")
    e(f"s_cmp_lt_u32 s{sT3}, 0x40000")
    e("s_cbranch_scc1 L_nonc")
    lab("L_nonc_ok")
    e(f"v_bfe_u32 v{vOld}, v{vLane}, 3, 1")
    e(f"v_cmp_eq_u32 vcc, 1, v{vOld}")
    e("s_nop 1")
    e(f"v_cndmask_b32 v{vNonS}, v{vNonC}, v{vNonC+1}, vcc")
m = 0
for i in range(7):
    for st in range(4):
        n2 = 4*i + st + 2
        rds = readB_ops(n2 // 4, n2 % 4) if n2 < 28 else []
        if n2 < 28 and n2 % 8 == 0:
            c = n2 // 4
            wait(vm=[f"B{c}", f"B{c+1}"] + (["B6"] if c == 4 else []))
            if c < 6: e("s_barrier")
        wait(lg=f"q{i}_{st}")
        for ti in range(2):
            mfma1(1, i, st, ti)
            for _ in range(2):
                if rds: rds.pop(0)()
            for f in pos.get(m, []): f()
            m += 1
stamp()
vPoll = 36
sH2 = 11
e(f"s_lshl_b32 s{sT0}, s{sM2c}, 1")
e(f"s_mul_i32 s{sT0}, s{sT0}, 112")
e(f"s_mul_i32 s{sT1}, s{sWave}, 28")
e(f"s_add_u32 s{sT0}, s{sT0}, s{sT1}")
e(f"s_lshl_b32 s{sH2}, s{sT0}, 10")
e(f"v_add_u32 v{vAW2c[0]}, 131072, v{vAW2[0]}")
e(f"v_add_u32 v{vAW2c[1]}, 131072, v{vAW2[1]}")
e("s_barrier")
dq2 += w2_dma_ops(3) + w2_dma_ops(4)
for _ in range(min(opt("nburst", 8), len(dq2))): dq2.pop(0)()
HB = 128
def h_ops(v):
    ops = []
    order = [(s, mi) for s in range(4) for mi in range(2)]
    if v == 6: order = [(s, 1) for s in range(4)] + [(s, 0) for s in range(4)]
    for n, (s, mi) in enumerate(order):
        def f(s=s, mi=mi, n=n):
            if n == 0:
                for hh in range(2):
                    hb(6 + hh, 2*v + hh)
                    e(f"s_lshl_b32 s{6+hh}, s{6+hh}, 11")
                    e(f"s_add_u32 s{6+hh}, s{6+hh}, s{sH2}")
            r = HB + 32*(v%4) + 8*s + 4*mi
            e(f"buffer_load_dwordx4 {vr(r,4)}, v{vG0 if mi==0 else vG1}, {sr(SWS,4)}, s{6 + s//2} offen offset:{(s%2)*1024} sc1"); VM.issue(f"h{v}_{s}" if v < 6 else f"h6_{s}_{mi}")
        ops.append(f)
    return ops
def mfma2(v, s, k):
    t, mi = k >> 1, k & 1
    r = HB + 32*(v%4) + 8*s + 4*mi
    c = "0" if (v == 0 and s == 0) else vr(acc(k),16)
    e(f"v_mfma_f32_32x32x16_bf16 {vr(acc(k),16)}, {ar(w2areg(v) + 8*s + 4*t, 4)}, {vr(r,4)}, {c}")
def pollload():
    if opt("p16", 1): e("s_mov_b64 exec, 0xffff")
    e(f"buffer_load_dword v{vPoll}, v{vFlagC}, {sr(SWS,4)}, 0 offen sc1")
    if opt("p16", 1): e("s_mov_b64 exec, -1")
def check(tag, name, masked):
    wait(vm=tag)
    e(f"s_mov_b32 s{sT3}, 0")
    lab(f"L_{name}")
    e(f"v_cmp_ne_u32 vcc, v{vPoll}, v{vNonS}")
    if masked:
        e("s_nop 0")
        e(f"s_and_b32 s{sT0}, vcc_lo, s{sAmask}")
        e(f"s_and_b32 s{sT0}, s{sT0}, 0xffff")
        e(f"s_cbranch_scc0 L_{name}_go")
    else:
        e("s_nop 0")
        e(f"s_and_b32 s{sT0}, vcc_lo, 0xffff")
        e(f"s_cbranch_scc0 L_{name}_go")
    pollload()
    e("s_waitcnt vmcnt(0)")
    e(f"s_add_u32 s{sT3}, s{sT3}, 1")
    e(f"s_cmp_lt_u32 s{sT3}, 0x40000")
    e(f"s_cbranch_scc1 L_{name}")
    lab(f"L_{name}_go")
gB = gelu_instrs(2, PK + 16) + gelu_instrs(3, PK + 24)
pos = {}
sG = [dq2.pop(0) for _ in range(min(opt("ng", 8), len(dq2)))]
for n, f in enumerate(sG): pos.setdefault(4 + (len(gB) - 8) * n // len(sG), []).append(f)
pos.setdefault(opt("pa", 100), []).append(pubA)
for n, f in enumerate(gB):
    f()
    for g in pos.get(n, []): g()
stamp()
post = list(dq2)
for u in (5, 6):
    post += [mk_wait_vm(u-5)] + w2_read_ops(u-5)
for u in (5, 6):
    post += [mk_wait_lg(u-5)] + w2_dma_ops(u)
PUBN = opt("pubn", 34)
for n, f in enumerate(post):
    f()
    if n == PUBN:
        wait(vm="hst1"); publish(1); stamp()
    if opt("dbg2", 0) and n in (PUBN - 1, PUBN + 8, PUBN + 17): stamp()
    if n == PUBN + opt("pdel", 0) and opt("epoll", 0):
        pollload(); VM.issue("poll1")
if not opt("epoll", 0):
    pollload(); VM.issue("poll1")
B2R = vT[8]
if opt("b2e", 1):
    for q in range(8): e(f"v_accvgpr_read_b32 v{B2R + q}, a{240 + q}")
else:
    e(f"v_lshrrev_b32 v{t0}, 5, v{vLane}")
    e(f"v_lshlrev_b32 v{t0}, 3, v{t0}")
    e(f"s_lshr_b32 s{sT0}, s{sWave}, 1")
    e(f"s_lshl_b32 s{sT0}, s{sT0}, 6")
    e(f"s_lshl_b32 s{sT1}, s{sFtl}, 7")
    e(f"s_add_u32 s{sT0}, s{sT0}, s{sT1}")
    B2R = vT[8]
    for q in range(4):
        e(f"buffer_load_dwordx2 {vr(B2R + 2*q, 2)}, v{t0}, {sr(SB2,4)}, s{sT0} offen offset:{16*q}"); VM.issue("b2")
wait(vm="w2_2")
for f in w2_read_ops(2): f()
if opt("dbg2", 0): stamp()
check("poll1", "pollA", True)
stamp()
if opt("p2pos", 0) == 0:
    pollload(); VM.issue("poll2")
hq = []
for v in range(7): hq += h_ops(v)
NH0 = opt("nh0", 10)
for _ in range(NH0): hq.pop(0)()
wait(vm="w2_3")
for f in w2_read_ops(3): f()
vRW, vRR = vT[0], [vT[1], vT[2], vT[3]]
e(f"v_add_u32 v{vRW}, s{sStage}, v{vH0}")
for k in (1, 2, 3):
    e(f"s_xor_b32 s{sT0}, s{sWave}, {k}")
    e(f"s_lshl_b32 s{sT0}, s{sT0}, 13")
    e(f"s_add_u32 s{sT0}, s{sT0}, {[0,0,4096,32768][k]}")
    e(f"v_add_u32 v{vRR[k-1]}, s{sT0}, v{vH0}")
RWOFF = {1: 0, 2: 4096, 3: 32768}
checked = [False]
for v in range(6):
    trs = w2_read_ops(v + 4) if v + 4 < 7 else []
    wait(lg=f"w2r{v}")
    for s in range(4):
        wait(vm=f"h{v}_{s}")
        for k in range(4):
            mfma2(v, s, k)
            issued = 56 - len(hq)
            target = min(56, 16 + 8*v + 2*s + (k+1)//2)
            if hq and issued < target + opt("ahead", 0) and issued // 8 - 4 < v:
                if issued == 24 and not checked[0]:
                    check("poll2", "pollB", False); checked[0] = True
                    stamp()
                if issued == opt("p2pos", 0):
                    pollload(); VM.issue("poll2")
                hq.pop(0)()
            if trs: trs.pop(0)()
assert not hq
stamp()
v = 6
wait(lg="w2r6")
def wr_ops(k):
    return [lambda q=q: e(f"ds_write_b128 v{vRW}, {vr(acc(k) + 4*q, 4)} offset:{RWOFF[k] + q*1024}") for q in range(4)]
BB = 224
fill = []
for q in range(4):
    for d in range(2):
        fill.append(f"v_lshlrev_b32 v{BB + 4*q + 2*d}, 16, v{B2R + 2*q + d}")
        fill.append(f"v_and_b32 v{BB + 4*q + 2*d + 1}, 0xffff0000, v{B2R + 2*q + d}")
vOA = vT[4]
fill += [f"v_and_b32 v{vOA}, 31, v{vLane}", f"v_lshrrev_b32 v{t5}, 5, v{vLane}", f"v_mul_u32_u24 v{vOA}, 896, v{vOA}", f"v_lshl_add_u32 v{vOA}, v{t5}, 4, v{vOA}"]
for s_ in range(4):
    wait(vm=f"h6_{s_}_1")
    mfma2(v, s_, 1); mfma2(v, s_, 3)
for sx in fill[:12]: e(sx)
w = wr_ops(1) + wr_ops(3)
for s_ in range(4):
    wait(vm=f"h6_{s_}_0")
    mfma2(v, s_, 2); w.pop(0)(); w.pop(0)()
for s_ in range(4):
    mfma2(v, s_, 0)
    for sx in fill[12+2*s_: 14+2*s_]: e(sx)
for f in wr_ops(2): f()
e(f"s_lshl_b32 s{sT0}, s{sM2c}, 1")
e(f"s_and_b32 s{sT1}, s{sWave}, 1")
e(f"s_add_u32 s{sT0}, s{sT0}, s{sT1}")
e(f"s_mul_i32 s{sT0}, s{sT0}, {32*896}")
e(f"s_lshl_b32 s{sT1}, s{sFtl}, 7")
e(f"s_add_u32 s{sT0}, s{sT0}, s{sT1}")
e(f"s_lshr_b32 s{sT1}, s{sWave}, 1")
e(f"s_lshl_b32 s{sT1}, s{sT1}, 6")
e(f"s_add_u32 s{sT0}, s{sT0}, s{sT1}")
e("s_waitcnt lgkmcnt(0)")
e("s_barrier")
RD = 128
for k in range(3):
    for q in range(4):
        e(f"ds_read_b128 {vr(RD + 16*k + 4*q, 4)}, v{vRR[k]} offset:{q*1024}")
OWN = acc(0)
for p in range(8): e(f"v_pk_add_f32 {vr(OWN+2*p,2)}, {vr(OWN+2*p,2)}, {vr(BB+2*p,2)}")
for k in range(3):
    e(f"s_waitcnt lgkmcnt({8 - 4*k})")
    for p in range(8): e(f"v_pk_add_f32 {vr(OWN+2*p,2)}, {vr(OWN+2*p,2)}, {vr(RD+16*k+2*p,2)}")
PO = 208
for p in range(8): e(f"v_cvt_pk_bf16_f32 v{PO+p}, v{OWN+2*p}, v{OWN+2*p+1}")
e("s_nop 1")
for qp in range(2):
    e(f"v_permlane32_swap_b32 v{PO+4*qp}, v{PO+4*qp+2}")
    e(f"v_permlane32_swap_b32 v{PO+4*qp+1}, v{PO+4*qp+3}")
for qp in range(2):
    e(f"buffer_store_dwordx4 {vr(PO+4*qp,4)}, v{vOA}, {sr(SOUT,4)}, s{sT0} offen offset:{32*qp}")
if STAMPS:
    stamp()
    e("s_waitcnt vmcnt(0)")
    stamp()
    e("s_memrealtime s[4:5]")
    e("s_waitcnt lgkmcnt(0)")
    e(f"s_lshl_b32 s6, s2, 2")
    e(f"s_add_u32 s6, s6, s{sWave}")
    e(f"s_lshl_b32 s6, s6, 6")
    e(f"s_add_u32 s6, s6, 0x8000000")
    e("v_mov_b32 v4, s100"); e("v_mov_b32 v5, s4")
    for k in range(14):
        if k < nstamp[0]:
            e(f"s_sub_u32 s7, s{74+2*k}, s98"); e(f"v_mov_b32 v{6+k}, s7")
        else: e(f"v_mov_b32 v{6+k}, 0")
    e("v_mov_b32 v20, s6")
    e(f"v_cmp_eq_u32 vcc, 0, v{vLane}")
    e("s_and_saveexec_b64 s[8:9], vcc")
    for k in range(4):
        e(f"buffer_store_dwordx4 v[{4+4*k}:{7+4*k}], v20, {sr(SWS,4)}, 0 offen offset:{16*k}")
lab("L_end")
e("s_endpgm")
lab("L_spare")
if PF:
    nstamp[0] = 0
    e(f"s_cmp_ge_u32 s2, {GRID}")
    e("s_cbranch_scc1 L_end2")
    e("s_load_dwordx2 s[4:5], s[0:1], 24")
    e("s_load_dwordx2 s[6:7], s[0:1], 8")
    e("s_load_dwordx2 s[32:33], s[0:1], 56")
    e("v_and_b32 v1, 63, v0")
    e("v_lshrrev_b32 v2, 6, v0")
    e("s_and_b32 s8, s2, 7")
    e("v_readfirstlane_b32 s9, v2")
    e(f"s_sub_u32 s14, s2, {NWG}")
    e("s_lshr_b32 s10, s14, 3")
    e("s_mul_i32 s10, s10, 401408")
    e("s_mul_i32 s11, s8, 50176")
    e("s_lshl_b32 s12, s9, 13")
    e("s_add_u32 s11, s11, s12")
    e("v_lshlrev_b32 v3, 7, v1")
    e("s_mov_b32 s22, 1605632")
    e("s_mov_b32 s23, 0x20000")
    e("s_mov_b32 s26, 1605632")
    e("s_mov_b32 s27, 0x20000")
    e("s_mov_b32 s34, 0x10000000")
    e("s_mov_b32 s35, 0x20000")
    e("s_lshl_b32 s13, s14, 2")
    e("s_add_u32 s13, s13, s9")
    e("s_mul_i32 s13, s13, 12544")
    e("v_min_u32 v6, 48, v1")
    e("v_lshlrev_b32 v6, 8, v6")
    e("s_waitcnt lgkmcnt(0)")
    e("s_mov_b32 s20, s4"); e("s_mov_b32 s21, s5")
    e("s_mov_b32 s24, s6"); e("s_mov_b32 s25, s7")
    if opt("pfw1", 1):
        e("buffer_load_dword v7, v6, s[24:27], s13 offen offset:128")
    if opt("pfwait", 0): e("s_waitcnt vmcnt(0)")
    if opt("pford", 1):
        for n in range(opt("pfpre", 2)):
            e("v_add_u32 v4, s11, v3")
            e("v_subrev_u32 v5, 401408, v4")
            e("v_min_u32 v4, v4, v5")
            e(f"buffer_load_dword v{24+n}, v4, s[20:23], s10 offen")
            e("s_add_u32 s11, s11, 32768")
            e("s_sub_u32 s12, s11, 401408")
            e("s_min_u32 s11, s11, s12")
        e("s_lshr_b32 s40, s14, 3")
        e("s_and_b32 s40, s40, 1")
        e("s_mul_i32 s41, s40, 7")
        e("s_sub_u32 s42, 28, s41")
        e("s_add_u32 s43, s41, 21")
        e("s_mul_i32 s44, s8, s42"); e("s_lshr_b32 s44, s44, 3")
        e("s_mul_i32 s45, s8, s43"); e("s_lshr_b32 s45, s45, 3")
        e("s_xor_b32 s46, s40, 1")
        for n in range(13):
            e(f"s_add_u32 s47, s9, {4*n}")
            e("s_min_u32 s47, s47, 48")
            e("s_sub_u32 s48, s47, s42")
            e("s_cmp_lt_u32 s47, s42")
            e("s_cselect_b32 s47, s47, s48")
            e("s_cselect_b32 s49, s44, s45")
            e("s_cselect_b32 s50, s42, s43")
            e("s_cselect_b32 s51, s40, s46")
            e("s_add_u32 s47, s47, s49")
            e("s_sub_u32 s48, s47, s50")
            e("s_cmp_ge_u32 s47, s50")
            e("s_cselect_b32 s47, s48, s47")
            e("s_mul_i32 s48, s47, 37"); e("s_lshr_b32 s48, s48, 8")
            e("s_add_u32 s49, s48, s51")
            e("s_mul_i32 s49, s49, 7")
            e("s_add_u32 s47, s47, s49")
            e("s_lshl_b32 s47, s47, 13")
            e("s_add_u32 s47, s47, s10")
            e(f"buffer_load_dword v{8+n}, v3, s[20:23], s47 offen")
    else:
      for n in range(13):
        e("v_add_u32 v4, s11, v3")
        e("v_subrev_u32 v5, 401408, v4")
        e("v_min_u32 v4, v4, v5")
        e(f"buffer_load_dword v{8+n}, v4, s[20:23], s10 offen")
        e("s_add_u32 s11, s11, 32768")
        e("s_sub_u32 s12, s11, 401408")
        e("s_min_u32 s11, s11, s12")
    if STAMPS:
        for n in (11, 6, 3, 0):
            e(f"s_waitcnt vmcnt({n})"); stamp()
        e("s_memrealtime s[4:5]")
        e("s_waitcnt lgkmcnt(0)")
        e(f"s_lshl_b32 s6, s2, 2")
        e(f"s_add_u32 s6, s6, s9")
        e(f"s_lshl_b32 s6, s6, 6")
        e(f"s_add_u32 s6, s6, 0x8000000")
        e("v_mov_b32 v4, s100"); e("v_mov_b32 v5, s4")
        for k in range(6):
            if k < nstamp[0]:
                e(f"s_sub_u32 s7, s{74+2*k}, s98"); e(f"v_mov_b32 v{6+k}, s7")
        e("v_mov_b32 v20, s6")
        e(f"v_cmp_eq_u32 vcc, 0, v1")
        e("s_and_saveexec_b64 s[8:9], vcc")
        for k in range(2):
            e(f"buffer_store_dwordx4 v[{4+4*k}:{7+4*k}], v20, s[32:35], 0 offen offset:{16*k}")
    e("s_waitcnt vmcnt(0)")
    lab("L_end2")
e("s_endpgm")
kd = f""".section .rodata,"a"
.p2align 6
.amdhsa_kernel {NAME}
  .amdhsa_next_free_vgpr 512
  .amdhsa_next_free_sgpr 102
  .amdhsa_accum_offset 256
  .amdhsa_group_segment_fixed_size 0
  .amdhsa_kernarg_size 64
  .amdhsa_user_sgpr_count 2
  .amdhsa_user_sgpr_kernarg_segment_ptr 1
  .amdhsa_system_sgpr_workgroup_id_x 1
.end_amdhsa_kernel
"""
open(OUT, "w").write(top + "\n".join(L) + "\n" + kd)
```

```python
import sys, struct
OUT = sys.argv[1] if len(sys.argv) > 1 else "standalone__dense_activation_gelu__prompt.s"
STAMPS = int(sys.argv[2]) if len(sys.argv) > 2 else 0
OPT = dict(a.split("=") for a in sys.argv[3:])
def opt(k, d): return int(OPT.get(k, d))
NAME = "standalone__dense_activation_gelu__prompt_kernel"
NWG = 224
PF = opt("pf", 1)
GRID = 256 if PF else 224
FLAGS_OFF = 0x800000
FS = opt("fs", 2)
GSH = FS + (5 if FS == 2 else 4)
L = []
def e(s): L.append("  " + s)
def lab(s): L.append(s + ":")

class Ctr:
    def __init__(self, maxv): self.q = []; self.maxv = maxv
    def issue(self, tag): self.q.append(tag)
    def need(self, tags):
        if isinstance(tags, str): tags = [tags]
        last = -1
        for i, t in enumerate(self.q):
            if t in tags: last = i
        if last < 0: return None
        n = len(self.q) - 1 - last
        self.q = self.q[last+1:]
        return min(n, self.maxv)
    def drain(self): self.q = []
VM = Ctr(63); LG = Ctr(15)
def wait(vm=None, lg=None):
    parts = []
    if vm is not None:
        n = VM.need(vm)
        if n is not None: parts.append(f"vmcnt({n})")
    if lg is not None:
        n = LG.need(lg)
        if n is not None: parts.append(f"lgkmcnt({n})")
    if parts: e("s_waitcnt " + " ".join(parts))
nstamp = [0]
def stamp():
    if STAMPS:
        i = nstamp[0]; nstamp[0] += 1
        assert i < 12
        e(f"{'s_memrealtime' if STAMPS == 3 else 's_memtime'} s[{74+2*i}:{75+2*i}]")

SX, SW1, SW2, SWS, SOUT, SB1, SB2, SDBG = 20, 24, 28, 32, 36, 40, 44, 48
sWave, sXcd, sMtl, sFtl, sMt, sFt, sRot, sM2c = 52, 53, 54, 55, 56, 57, 58, 59
sT0, sT1, sT2, sT3 = 60, 61, 62, 63
sXbase, sWbase, sM0x, sM0w, sC = 64, 65, 66, 67, 68
sHoff, sW2base, sStage = 69, 70, 71
sAmask = 72
sM2p = 3
sPkA, sPkB = 4, 5
def hb(dst, n):
    e(f"s_bfe_u32 s{dst}, s{sPkA if n < 8 else sPkB}, {(4 << 16) | (4 * (n % 8))}")
vLane = 1
vXo = [2, 3]
vWo = 4
vW2o = 5
vW2q = [5, 60, 61, 62]
vAB = [6, 7, 8, 9]; vAB2 = [10, 11, 12, 13]
vAA = [14, 15]; vAA2 = [16, 17]; vAA3 = [18, 19]
vAW2 = [20, 21]; vAW2b = [22, 23]; vAW2c = [63, 37]
vH0 = 24
vG0, vG1 = 25, 26
vFlagP = [27, 28]; vFlagC = 29
vNonP = 30; vNonC = 32
vNonS = 31
vOld, vZero = 34, 35
vT = list(range(38, 60))
ACC = 64; BIAS = 128; FRAG = 192; PK = 224; RAW = 224
XF = 128
SLOT = 24576; W1B = 98304; BIASL = 155648
def acc(k): return ACC + 16 * k
def vr(a, n): return f"v[{a}:{a+n-1}]"
def ar(a, n): return f"a[{a}:{a+n-1}]"
def sr(a, n): return f"s[{a}:{a+n-1}]"
def fbits(x): return "0x%08x" % struct.unpack("<I", struct.pack("<f", x))[0]
t0, t1, t2, t3, t4, t5 = vT[0:6]

hdr = open("standalone__dense_activation_gelu__prompt.s.ref").read().split("; Override")[0]
top = hdr + f"; Fused MLP: phase 1 h=gelu(x@w1+b1) tiles -> d_ws (write-through) + flags, phase 2 out=h@w2+b2.\n; @launch grid=({GRID},1,1) block=(256,1,1) lds=163840\n"
top += f'.amdgcn_target "amdgcn-amd-amdhsa--gfx950"\n.text\n.globl {NAME}\n.p2align 8\n.type {NAME},@function\n{NAME}:\n'

if STAMPS:
    e("s_memrealtime s[100:101]")
    e(f"{'s_memrealtime' if STAMPS == 3 else 's_memtime'} s[98:99]")
e(f"s_cmp_ge_u32 s2, {NWG}")
e("s_cbranch_scc1 L_spare")
e("s_load_dwordx16 s[4:19], s[0:1], 0")
e(f"v_and_b32 v{vLane}, 63, v0")
e(f"v_lshrrev_b32 v{t0}, 6, v0")
e(f"s_and_b32 s{sXcd}, s2, 7")
e(f"v_readfirstlane_b32 s{sWave}, v{t0}")
e("s_nop 3")
if opt("cpf", 1):
    NL = opt("cpfn", 4)
    e(f"s_cmp_lg_u32 s{sWave}, 1")
    e("s_cbranch_scc1 L_nocpf")
    e(f"s_getpc_b64 s[{sT0}:{sT1}]")
    lab("L_pc")
    e(f"s_lshr_b32 s{sT2}, s2, 3")
    e(f"s_mul_i32 s{sT2}, s{sT2}, {NL}")
    e(f"v_min_u32 v{t4}, {NL-1}, v{vLane}")
    e(f"v_add_lshl_u32 v{t4}, v{t4}, s{sT2}, 7")
    e(f"v_min_u32 v{t4}, L_end-L_pc, v{t4}")
    e(f"global_load_dword v37, v{t4}, s[{sT0}:{sT1}]")
    lab("L_nocpf")
e(f"s_lshr_b32 s{sT0}, s2, 3")
e(f"s_mul_i32 s{sMtl}, s{sT0}, 37")
e(f"s_lshr_b32 s{sMtl}, s{sMtl}, 8")
e(f"s_mul_i32 s{sT1}, s{sMtl}, 7")
e(f"s_sub_u32 s{sFtl}, s{sT0}, s{sT1}")
e(f"s_lshr_b32 s{sMt}, s{sXcd}, 1")
e(f"s_lshl_b32 s{sMt}, s{sMt}, 2")
e(f"s_add_u32 s{sMt}, s{sMt}, s{sMtl}")
e(f"s_and_b32 s{sFt}, s{sXcd}, 1")
e(f"s_mul_i32 s{sFt}, s{sFt}, 7")
e(f"s_add_u32 s{sFt}, s{sFt}, s{sFtl}")
e(f"s_lshl_b32 s{sM2c}, s{sXcd}, 2")
e(f"s_add_u32 s{sM2c}, s{sM2c}, s{sMtl}")
e(f"s_lshl_b32 s{sRot}, s{sMtl}, 1")
e(f"s_add_u32 s{sRot}, s{sRot}, s{sFtl}")
e(f"s_add_u32 s{sRot}, s{sRot}, s{sXcd}")
e(f"s_mul_i32 s{sT0}, s{sRot}, 37")
e(f"s_lshr_b32 s{sT0}, s{sT0}, 8")
e(f"s_mul_i32 s{sT0}, s{sT0}, 7")
e(f"s_sub_u32 s{sRot}, s{sRot}, s{sT0}")
e(f"v_lshrrev_b32 v{t0}, 3, v{vLane}")
e(f"v_and_b32 v{t1}, 7, v{vLane}")
e(f"v_lshrrev_b32 v{t2}, 1, v{t0}")
e(f"v_xor_b32 v{t3}, v{t1}, v{t2}")
e(f"v_xor_b32 v{t4}, 4, v{t3}")
e(f"v_mul_u32_u24 v{t5}, 896, v{t0}")
e(f"v_lshl_add_u32 v{vXo[0]}, v{t3}, 4, v{t5}")
e(f"v_lshl_add_u32 v{vXo[1]}, v{t4}, 4, v{t5}")
e(f"v_add_u32 v{vXo[1]}, {8*896}, v{vXo[1]}")
e(f"v_and_b32 v{t2}, 1, v{t2}")
e(f"v_lshlrev_b32 v{t2}, 2, v{t2}")
e(f"v_xor_b32 v{t2}, v{t1}, v{t2}")
e(f"v_lshl_add_u32 v{vW2o}, v{t2}, 4, v{t5}")
for q in range(1, 4): e(f"v_add_u32 v{vW2q[q]}, {q*(7168-1024)}, v{vW2o}")
e(f"v_mul_u32_u24 v{t5}, 3584, v{t0}")
e(f"v_lshl_add_u32 v{vWo}, v{t2}, 4, v{t5}")
e(f"s_lshl_b32 s{sT0}, s{sMt}, 2")
e(f"s_add_u32 s{sT0}, s{sT0}, s{sWave}")
e(f"s_mul_i32 s{sXbase}, s{sT0}, 28672")
e(f"s_mul_i32 s{sWbase}, s{sWave}, {16*3584}")
e(f"s_lshl_b32 s{sT0}, s{sFt}, 8")
e(f"s_add_u32 s{sWbase}, s{sWbase}, s{sT0}")
e(f"s_lshl_b32 s{sM0x}, s{sWave}, 12")
e(f"s_lshl_b32 s{sM0w}, s{sWave}, 11")
e(f"s_mov_b32 s{sC}, s{sRot}")
for d, n in ((SX, 1835008), (SW1, 1605632), (SW2, 1605632), (SWS, 0x10000000), (SOUT, 1835008), (SB1, 3584), (SB2, 896), (SDBG, 256)):
    e(f"s_mov_b32 s{d+2}, {n}"); e(f"s_mov_b32 s{d+3}, 0x20000")
e(f"v_and_b32 v{t0}, 31, v{vLane}")
e(f"v_lshrrev_b32 v{t1}, 5, v{vLane}")
e(f"v_bfe_u32 v{t2}, v{vLane}, 1, 3")
e(f"v_xor_b32 v{t2}, v{t2}, v{t1}")
e(f"v_lshlrev_b32 v{t0}, 7, v{t0}")
e(f"v_add_u32 v{t0}, s{sM0x}, v{t0}")
for s in range(4):
    e(f"v_xor_b32 v{t3}, {2*s}, v{t2}")
    e(f"v_lshl_add_u32 v{vAB[s]}, v{t3}, 4, v{t0}")
    e(f"v_add_u32 v{vAB2[s]}, {2*SLOT}, v{vAB[s]}")
e(f"v_bfe_u32 v{t0}, v{vLane}, 2, 2")
e(f"v_and_b32 v{t2}, 3, v{vLane}")
e(f"v_bfe_u32 v{t3}, v{vLane}, 4, 1")
e(f"v_lshlrev_b32 v{t2}, 3, v{t2}")
e(f"v_lshl_add_u32 v{t2}, v{t3}, 5, v{t2}")
e(f"v_lshl_add_u32 v{t3}, v{t1}, 3, v{t0}")
e(f"v_lshl_add_u32 v{t3}, v{t3}, 7, v{t2}")
e(f"v_lshrrev_b32 v{t4}, 1, v{t0}")
e(f"v_lshl_add_u32 v{t5}, v{t4}, 6, v{t3}")
e(f"v_add_u32 v{vAA[0]}, 16384, v{t5}")
e(f"v_add_u32 v{vAA2[0]}, {16384 + 2*SLOT}, v{t5}")
e(f"v_add_u32 v{vAA3[0]}, {W1B}, v{t5}")
e(f"v_xor_b32 v{t5}, 64, v{t5}")
e(f"v_add_u32 v{vAA[1]}, 16384, v{t5}")
e(f"v_add_u32 v{vAA2[1]}, {16384 + 2*SLOT}, v{t5}")
e(f"v_add_u32 v{vAA3[1]}, {W1B}, v{t5}")
e(f"s_lshl_b32 s{sStage}, s{sWave}, 13")
e(f"v_lshl_add_u32 v{t3}, v{t1}, 2, v{t0}")
e(f"v_lshl_add_u32 v{t3}, v{t3}, 7, v{t2}")
e(f"v_add_u32 v{t3}, s{sStage}, v{t3}")
e(f"s_lshr_b32 s{sT0}, s{sWave}, 1")
e(f"v_xor_b32 v{t4}, s{sT0}, v{t4}")
e(f"v_lshl_add_u32 v{vAW2[0]}, v{t4}, 6, v{t3}")
e(f"v_xor_b32 v{vAW2[1]}, 64, v{vAW2[0]}")
e(f"v_add_u32 v{vAW2b[0]}, 65536, v{vAW2[0]}")
e(f"v_add_u32 v{vAW2b[1]}, 65536, v{vAW2[1]}")
e(f"v_lshlrev_b32 v{vH0}, 4, v{vLane}")
e(f"s_and_b32 s{sT0}, s{sWave}, 1")
e(f"s_mul_i32 s{sT0}, s{sT0}, 114688")
e(f"v_add_u32 v{vG0}, s{sT0}, v{vH0}")
e(f"s_sub_u32 s{sT0}, 114688, s{sT0}")
e(f"v_add_u32 v{vG1}, s{sT0}, v{vH0}")
e(f"s_mul_i32 s{sW2base}, s{sWave}, {448*896}")
e(f"s_lshl_b32 s{sT0}, s{sFtl}, 7")
e(f"s_add_u32 s{sW2base}, s{sW2base}, s{sT0}")
e(f"v_mov_b32 v{vZero}, 0")
e(f"v_lshlrev_b32 v{t0}, 3, v{t1}")
e(f"v_add_u32 v{t0}, {BIASL}, v{t0}")
e(f"v_bfe_u32 v{t2}, v{vLane}, 3, 2")
e(f"v_and_b32 v{t3}, 7, v{vLane}")
e(f"v_lshlrev_b32 v{t2}, {GSH}, v{t2}")
e(f"v_lshl_add_u32 v{t2}, v{t3}, {FS}, v{t2}")
e(f"v_lshl_add_u32 v{t2}, v{t1}, {FS+3}, v{t2}")
e(f"s_lshl_b32 s{sT1}, s{sM2c}, {GSH+2}")
e(f"s_add_u32 s{sT1}, s{sT1}, {FLAGS_OFF}")
e("s_waitcnt lgkmcnt(0)")
def srd(d, p):
    e(f"s_mov_b32 s{d}, s{p}"); e(f"s_mov_b32 s{d+1}, s{p+1}")
srd(SX, 4); srd(SW1, 6)
if not opt("dbg2", 0): stamp()

def adv():
    e(f"s_add_u32 s{sC}, s{sC}, 1")
    e(f"s_cmp_ge_u32 s{sC}, 7")
    e(f"s_cselect_b32 s{sC}, 0, s{sC}")
def dmaA_ops(i):
    slot = (i % 4) * SLOT
    ops = []
    def setup():
        e(f"s_lshl_b32 s{sT2}, s{sC}, 7")
        e(f"s_add_u32 s{sT2}, s{sT2}, s{sXbase}")
        e(f"s_mul_i32 s{sT3}, s{sC}, {64*3584}")
        e(f"s_add_u32 s{sT3}, s{sT3}, s{sWbase}")
        adv()
    def fx(q):
        def f():
            e(f"s_add_u32 m0, s{sM0x}, {slot + q*1024}")
            if q == 0: setup()
            elif q == 2: e(f"s_add_u32 s{sT2}, s{sT2}, {16*896}")
            else: e("s_nop 0")
            e(f"buffer_load_dwordx4 v{vXo[q&1]}, {sr(SX,4)}, s{sT2} offen lds"); VM.issue(f"c{i}")
        return f
    def fw(q):
        def f():
            e(f"s_add_u32 m0, s{sM0w}, {slot + 16384 + q*1024}")
            if q: e(f"s_add_u32 s{sT3}, s{sT3}, {8*3584}")
            else: e("s_nop 0")
            e(f"buffer_load_dwordx4 v{vWo}, {sr(SW1,4)}, s{sT3} offen lds"); VM.issue(f"c{i}")
        return f
    return [fx(0), fw(0), fx(1), fx(2), fw(1), fx(3)] if i < 7 else []
def dmaB_ops(i):
    def fw(q):
        def f():
            e(f"s_add_u32 m0, s{sM0w}, {W1B + i*8192 + q*1024}")
            if q: e(f"s_add_u32 s{sT3}, s{sT3}, {8*3584}")
            else:
                e(f"s_mul_i32 s{sT3}, s{sC}, {64*3584}")
                e(f"s_add_u32 s{sT3}, s{sT3}, s{sWbase}")
                e(f"s_add_u32 s{sT3}, s{sT3}, 128")
                adv()
            e(f"buffer_load_dwordx4 v{vWo}, {sr(SW1,4)}, s{sT3} offen lds"); VM.issue(f"B{i}")
        return f
    return [fw(0), fw(1)]

for f in dmaA_ops(0): f()
srd(SB1, 8)
e(f"s_cmp_lg_u32 s{sWave}, 2")
e("s_cbranch_scc1 L_nob1")
e(f"s_mov_b32 m0, {BIASL}")
e(f"s_lshl_b32 s{sT0}, s{sFt}, 8")
e(f"v_lshlrev_b32 v{t4}, 2, v{vLane}")
e(f"buffer_load_dword v{t4}, {sr(SB1,4)}, s{sT0} offen lds")
lab("L_nob1")
srd(SWS, 18); srd(SDBG, 16); srd(SW2, 10); srd(SOUT, 14); srd(SB2, 12)
e(f"s_or_b32 s{sT0}, s{sFtl}, s{sWave}")
e(f"s_cmp_lg_u32 s{sT0}, 0")
e("s_cbranch_scc1 L_noleader0")
e(f"buffer_load_dword v{vOld}, v{t2}, {sr(SWS,4)}, s{sT1} offen sc1")
lab("L_noleader0")
for f in dmaA_ops(1): f()
e(f"v_and_b32 v{t3}, 7, v{vLane}")
e(f"v_min_u32 v{t3}, 6, v{t3}")
e(f"v_bfe_u32 v{t4}, v{vLane}, 3, 1")
e(f"v_lshlrev_b32 v{t3}, {FS}, v{t3}")
e(f"v_lshl_add_u32 v{t3}, v{t4}, {FS+3}, v{t3}")
e(f"s_lshl_b32 s{sT0}, s{sM2c}, 2")
e(f"s_add_u32 s{sT0}, s{sT0}, s{sWave}")
e(f"s_lshl_b32 s{sT0}, s{sT0}, {GSH}")
e(f"s_add_u32 s{sT0}, s{sT0}, {FLAGS_OFF}")
e(f"v_add_u32 v{vFlagC}, s{sT0}, v{t3}")
e(f"s_and_b32 s11, s{sWave}, 1")
e(f"s_cmp_eq_u32 s11, 0")
e(f"s_mov_b32 s16, 0x2a2a2a2a")
e(f"s_cselect_b32 s{sAmask}, 0x55555555, s16")
e(f"s_mov_b32 s{sAmask+1}, s{sAmask}")
e(f"s_lshl_b32 s17, s11, 1")
e(f"s_sub_u32 s12, 8, s17")
e(f"s_add_u32 s13, s17, 6")
e(f"s_sub_u32 s18, 2, s17")
e(f"s_mov_b32 s{sPkA}, 0"); e(f"s_mov_b32 s{sPkB}, 0")
def mod1(dst, n):
    e(f"s_sub_u32 s16, s{dst}, s{n}"); e(f"s_cmp_ge_u32 s{dst}, s{n}"); e(f"s_cselect_b32 s{dst}, s16, s{dst}")
e(f"s_mov_b32 s14, s{sRot}"); mod1(14, 12)
e(f"s_mov_b32 s15, s{sRot}"); mod1(15, 13)
def elem(idx, base):
    e(f"s_lshr_b32 s19, s{idx}, 1"); e(f"s_lshl_b32 s19, s19, 2"); e(f"s_and_b32 s16, s{idx}, 1")
    e(f"s_add_u32 s19, s19, s16"); e(f"s_add_u32 s19, s19, s{base}")
for n in range(14):
    dstp = sPkA if n < 8 else sPkB
    sh = 4 * (n % 8)
    if n < 6:
        elem(14, 17)
        e(f"s_add_u32 s14, s14, 1"); mod1(14, 12)
    elif n >= 8:
        elem(15, 18)
        e(f"s_add_u32 s15, s15, 1"); mod1(15, 13)
    else:
        elem(14, 17); e(f"s_mov_b32 s10, s19")
        elem(15, 18)
        e(f"s_cmp_eq_u32 s11, 0"); e(f"s_cselect_b32 s19, s10, s19")
        e(f"s_add_u32 s14, s14, 1"); mod1(14, 12)
        e(f"s_add_u32 s15, s15, s11"); mod1(15, 13)
    e(f"s_lshl_b32 s19, s19, {sh}")
    e(f"s_or_b32 s{dstp}, s{dstp}, s19")
e(f"s_lshr_b32 s{sT0}, s{sWave}, 1")
e(f"s_lshl_b32 s{sT1}, s{sMt}, 1")
e(f"s_add_u32 s{sM2p}, s{sT0}, s{sT1}")
for ps in range(2):
    e(f"s_lshl_b32 s12, s{sFt}, 1")
    if ps: e(f"s_add_u32 s12, s12, 1")
    e(f"s_mul_i32 s13, s12, 37")
    e(f"s_lshr_b32 s13, s13, 8")
    e(f"s_mul_i32 s14, s13, 7")
    e(f"s_sub_u32 s12, s12, s14")
    e(f"s_lshl_b32 s14, s{sM2p}, 2")
    e(f"s_add_u32 s14, s14, s13")
    e(f"s_lshl_b32 s14, s14, {GSH}")
    e(f"s_lshl_b32 s12, s12, {FS}")
    e(f"s_add_u32 s14, s14, s12")
    e(f"s_lshl_b32 s12, s11, {FS+3}")
    e(f"s_add_u32 s14, s14, s12")
    e(f"s_add_u32 s14, s14, {FLAGS_OFF}")
    if opt("fl", 0):
        e(f"v_lshlrev_b32 v{vFlagP[ps]}, 2, v{vLane}")
        e(f"v_add_u32 v{vFlagP[ps]}, s14, v{vFlagP[ps]}")
    else:
        e(f"v_mov_b32 v{vFlagP[ps]}, s14")
e(f"s_lshl_b32 s{sT0}, s{sMt}, 2")
e(f"s_add_u32 s{sT0}, s{sT0}, s{sWave}")
e(f"s_mul_i32 s{sT0}, s{sT0}, 112")
e(f"s_lshl_b32 s{sT1}, s{sFt}, 3")
e(f"s_add_u32 s{sT0}, s{sT0}, s{sT1}")
e(f"s_lshl_b32 s{sHoff}, s{sT0}, 10")
C0, C1, ONE = vT[16], vT[18], vT[20]
c0 = -2.0 * 0.7978845608028654 * 1.4426950408889634
c1 = c0 * 0.044715
for r, val in ((C0, c0), (C1, c1), (ONE, 1.0)):
    e(f"v_mov_b32 v{r}, {fbits(val)}"); e(f"v_mov_b32 v{r+1}, {fbits(val)}")
if opt("pre3", 1):
    for f in dmaA_ops(2): f()
wait(vm="c0")
if not opt("dbg2", 0): stamp()
e(f"s_or_b32 s{sT0}, s{sFtl}, s{sWave}")
e(f"s_cmp_lg_u32 s{sT0}, 0")
e("s_cbranch_scc1 L_noleader")
e(f"v_and_b32 v{t1}, 31, v{vLane}")
e(f"v_lshrrev_b32 v{t2}, v{t1}, v{vOld}")
e(f"v_and_b32 v{t2}, 1, v{t2}")
e(f"v_cmp_eq_u32 vcc, 0, v{t2}")
e("s_nop 4")
e(f"s_or_b32 s{sT0}, vcc_lo, 0x80808080")
e(f"s_or_b32 s{sT1}, vcc_hi, 0x80808080")
e(f"v_mov_b32 v{t2}, s{sT0}")
e(f"v_mov_b32 v{t3}, s{sT1}")
e(f"s_lshl_b32 s{sT1}, s{sM2c}, 3")
e("s_mov_b64 exec, 1")
e(f"buffer_store_dwordx2 v[{t2}:{t3}], v{vZero}, {sr(SDBG,4)}, s{sT1} offen sc1")
e("s_mov_b64 exec, -1")
lab("L_noleader")
e("s_barrier")

def readA_ops(i, s):
    slot = i % 4
    fb = FRAG + 8 * s
    aA = vAA if slot < 2 else vAA2
    aB = vAB if slot < 2 else vAB2
    so = (slot % 2) * SLOT
    def rb():
        e(f"ds_read_b128 {ar(XF + 16*i + 4*s, 4)}, v{aB[s]} offset:{so}"); LG.issue(f"r{i}_{s}")
    def ra(ti, e2):
        def f(): e(f"ds_read_b64_tr_b16 {vr(fb + 4*ti + 2*e2, 2)}, v{aA[ti]} offset:{so + s*2048 + e2*512}"); LG.issue(f"r{i}_{s}")
        return f
    return [rb, ra(0,0), ra(0,1), ra(1,0), ra(1,1)]
def readB_ops(i, s):
    fb = FRAG + 8 * s
    def ra(ti, e2):
        def f(): e(f"ds_read_b64_tr_b16 {vr(fb + 4*ti + 2*e2, 2)}, v{vAA3[ti]} offset:{i*8192 + s*2048 + e2*512}"); LG.issue(f"q{i}_{s}")
        return f
    return [ra(0,0), ra(0,1), ra(1,0), ra(1,1)]
def mfma1(ps, i, s, ti):
    k = 2*ps + ti
    fb = FRAG + 8 * s
    c = vr(BIAS + 16*k, 16) if (i == 0 and s == 0) else vr(acc(k), 16)
    e(f"v_mfma_f32_32x32x16_bf16 {vr(acc(k),16)}, {vr(fb+4*ti,4)}, {ar(XF + 16*i + 4*s, 4)}, {c}")

W2X = [0, 1, 2, 3, 4, 0, 1]
def w2areg(v): return 32*v if v < 4 else XF + 32*(v-4)
def w2_dma_ops(v):
    ops = []
    X = W2X[v]
    for q in range(8):
        def f(q=q):
            if q == 0:
                e(f"s_add_u32 m0, s{sStage}, {X*32768}")
                hb(sT2, 2*v)
                e(f"s_mul_i32 s{sT2}, s{sT2}, {32*896}")
                e(f"s_add_u32 s{sT2}, s{sT2}, s{sW2base}")
            if q == 4:
                e(f"s_add_u32 m0, s{sStage}, {X*32768 + 4096}")
                hb(sT2, 2*v + 1)
                e(f"s_mul_i32 s{sT2}, s{sT2}, {32*896}")
                e(f"s_add_u32 s{sT2}, s{sT2}, s{sW2base}")
            e(f"buffer_load_dwordx4 v{vW2q[q%4]}, {sr(SW2,4)}, s{sT2} offen offset:{(q%4)*1024} lds"); VM.issue(f"w2_{v}")
        ops.append(f)
    return ops
def w2_read_ops(v):
    ops = []
    X = W2X[v]
    base = vAW2 if X <= 1 else (vAW2b if X <= 3 else vAW2c)
    off = (X % 2) * 32768
    for s in range(4):
        for t in range(2):
            for e2 in range(2):
                def f(s=s, t=t, e2=e2):
                    e(f"ds_read_b64_tr_b16 {ar(w2areg(v) + 8*s + 4*t + 2*e2, 2)}, v{base[t]} offset:{off + s*2048 + e2*1024}"); LG.issue(f"w2r{v}")
                ops.append(f)
    return ops

for k in range(4):
    for q in range(4):
        e(f"ds_read_b64 {vr(RAW + 8*(k%2) + 2*q + 16*(k//2), 2)}, v{t0} offset:{64*k + 16*q}"); LG.issue(f"b1_{k//2}")
def unpack_bias(half):
    for k in (2*half, 2*half+1):
        for q in range(4):
            for d in range(2):
                src = RAW + 8*(k%2) + 2*q + 16*(k//2) + d
                e(f"v_lshlrev_b32 v{BIAS + 16*k + 4*q + 2*d}, 16, v{src}")
                e(f"v_and_b32 v{BIAS + 16*k + 4*q + 2*d + 1}, 0xffff0000, v{src}")
wait(lg="b1_0")
for f in readA_ops(0, 0): f()
unpack_bias(0)
for f in readA_ops(0, 1): f()
dq = []
if not opt("pre3", 1): dq += dmaA_ops(2)
for i in range(7):
    if i + 3 < 7: dq += dmaA_ops(i + 3)
    if i == 3:
        dq.append(lambda: e(f"s_mov_b32 s{sC}, s{sRot}"))
        for b in range(opt("bl", 7)): dq += dmaB_ops(b)
    nper = opt("dper", 8)
    budget = nper
    for st in range(4):
        rds = []
        if st < 2: rds = readA_ops(i, st + 2)
        elif st == 3:
            if i < 6: rds = readA_ops(i + 1, 0) + readA_ops(i + 1, 1)
            else: rds = readB_ops(0, 0) + readB_ops(0, 1)
        if st == 3:
            if i == 0:
                wait(lg="b1_1"); unpack_bias(1)
            if i == 4:
                e(f"s_lshl_b32 s{sT0}, s{sM2p}, 3")
                e(f"s_and_b32 s{sT1}, s{sWave}, 1")
                e(f"s_lshl_b32 s{sT1}, s{sT1}, 2")
                e(f"s_add_u32 s{sT0}, s{sT0}, s{sT1}")
                e(f"s_lshl_b32 s{sT1}, s{sM2c}, 3")
                e(f"buffer_load_dword v{vNonP}, v{vZero}, {sr(SDBG,4)}, s{sT0} offen sc1"); VM.issue("non")
                e(f"buffer_load_dwordx2 v[{vNonC}:{vNonC+1}], v{vZero}, {sr(SDBG,4)}, s{sT1} offen sc1"); VM.issue("non")
            if i == opt("b2i", 5) and opt("b2e", 1):
                e(f"v_lshrrev_b32 v{t1}, 5, v{vLane}")
                e(f"v_lshlrev_b32 v{t1}, 3, v{t1}")
                e(f"s_lshr_b32 s{sT0}, s{sWave}, 1")
                e(f"s_lshl_b32 s{sT0}, s{sT0}, 6")
                e(f"s_lshl_b32 s{sT1}, s{sFtl}, 7")
                e(f"s_add_u32 s{sT0}, s{sT0}, s{sT1}")
                for q in range(4):
                    e(f"buffer_load_dwordx2 {ar(240 + 2*q, 2)}, v{t1}, {sr(SB2,4)}, s{sT0} offen offset:{16*q}"); VM.issue("b2")
            if i == 6:
                while dq: dq.pop(0)()
            wait(vm=(f"c{i+1}" if i < 6 else ["B0", "B1"]), lg=f"r{i}_3")
            e("s_barrier")
        else:
            wait(lg=f"r{i}_{st}")
        for ti in range(2):
            mfma1(0, i, st, ti)
            n = (len(rds) + (1 - ti)) // (2 - ti)
            for _ in range(n): rds.pop(0)()
            if st < 3:
                for _ in range(2 if st == 2 else 1):
                    if dq and budget > 0: dq.pop(0)(); budget -= 1
if not opt("dbg2", 0): stamp()
def gcost(f): return getattr(f, 'cost', 8)
def gelu_instrs(k, pk, packed=True):
    a = acc(k); ps, ti = k >> 1, k & 1
    out = []
    for g in range(2):
        base = a + 8*g
        tt = vT[8*g: 8*g+8]
        seq = []
        if packed:
            for p in range(4): seq.append(f"v_pk_mul_f32 {vr(tt[2*p],2)}, {vr(base+2*p,2)}, {vr(base+2*p,2)}")
            for p in range(4): seq.append(f"v_pk_fma_f32 {vr(tt[2*p],2)}, {vr(tt[2*p],2)}, {vr(C1,2)}, {vr(C0,2)}")
            for p in range(4): seq.append(f"v_pk_mul_f32 {vr(tt[2*p],2)}, {vr(tt[2*p],2)}, {vr(base+2*p,2)}")
            for p in range(8): seq.append(f"v_exp_f32 v{tt[p]}, v{tt[p]}")
            for p in range(4): seq.append(f"v_pk_add_f32 {vr(tt[2*p],2)}, {vr(tt[2*p],2)}, {vr(ONE,2)}")
            for p in range(8): seq.append(f"v_rcp_f32 v{tt[p]}, v{tt[p]}")
            for p in range(4): seq.append(f"v_pk_mul_f32 {vr(tt[2*p],2)}, {vr(tt[2*p],2)}, {vr(base+2*p,2)}")
        else:
            for p in range(8): seq.append(f"v_mul_f32 v{tt[p]}, v{base+p}, v{base+p}")
            for p in range(8): seq.append(f"v_fmaak_f32 v{tt[p]}, v{tt[p]}, v{C1}, {fbits(c0)}")
            for p in range(8): seq.append(f"v_mul_f32 v{tt[p]}, v{tt[p]}, v{base+p}")
            for p in range(8): seq.append(f"v_exp_f32 v{tt[p]}, v{tt[p]}")
            for p in range(8): seq.append(f"v_add_f32 v{tt[p]}, 1.0, v{tt[p]}")
            for p in range(8): seq.append(f"v_rcp_f32 v{tt[p]}, v{tt[p]}")
            for p in range(8): seq.append(f"v_mul_f32 v{tt[p]}, v{tt[p]}, v{base+p}")
        for p in range(4): seq.append(f"v_cvt_pk_bf16_f32 v{pk+4*g+p}, v{tt[2*p]}, v{tt[2*p+1]}")
        for sx in seq:
            fn = lambda sx=sx: e(sx)
            fn.cost = 8 if sx.startswith(("v_exp", "v_rcp")) else 4
            out.append(fn)
        def st(g=g):
            off = (4*ps + 2*ti + g) * 1024
            if off >= 4096:
                e(f"s_add_u32 s{sT0}, s{sHoff}, 4096")
                e(f"buffer_store_dwordx4 {vr(pk+4*g,4)}, v{vH0}, {sr(SWS,4)}, s{sT0} offen offset:{off-4096} sc1")
            else:
                e(f"buffer_store_dwordx4 {vr(pk+4*g,4)}, v{vH0}, {sr(SWS,4)}, s{sHoff} offen offset:{off} sc1")
            VM.issue(f"hst{ps}")
        out.append(st)
    return out
def mk_wait_vm(u): return lambda: wait(vm=f"w2_{u}")
def mk_wait_lg(u): return lambda: wait(lg=f"w2r{u}")
def publish(ps):
    e(f"s_mov_b32 s{sT3}, 0")
    lab(f"L_nonp{ps}")
    e(f"v_cmp_ne_u32 vcc, 0, v{vNonP}")
    e(f"s_cbranch_vccnz L_nonp_ok{ps}")
    e(f"s_lshl_b32 s{sT0}, s{sM2p}, 3")
    e(f"s_and_b32 s{sT1}, s{sWave}, 1")
    e(f"s_lshl_b32 s{sT1}, s{sT1}, 2")
    e(f"s_add_u32 s{sT0}, s{sT0}, s{sT1}")
    e(f"buffer_load_dword v{vNonP}, v{vZero}, {sr(SDBG,4)}, s{sT0} offen sc1")
    e("s_waitcnt vmcnt(0)")
    e(f"s_add_u32 s{sT3}, s{sT3}, 1")
    e(f"s_cmp_lt_u32 s{sT3}, 0x40000")
    e(f"s_cbranch_scc1 L_nonp{ps}")
    lab(f"L_nonp_ok{ps}")
    if opt("fl", 0): e(f"s_mov_b64 exec, {hex((1 << ((1 << FS)//4)) - 1)}")
    elif opt("one", 1): e("s_mov_b64 exec, 1")
    e(f"buffer_store_dword v{vNonP}, v{vFlagP[ps]}, {sr(SWS,4)}, 0 offen sc1"); VM.issue("flag")
    if opt("one", 1): e("s_mov_b64 exec, -1")
gA = gelu_instrs(0, PK, opt("pkA", 0)) + gelu_instrs(1, PK + 8, opt("pkA", 0))
GS, GE = opt("gs", 2), opt("ge", 56)
dq2 = w2_dma_ops(0) + w2_dma_ops(1) + w2_dma_ops(2)
NB = opt("nb", 24)
sB = [dq2.pop(0) for _ in range(NB)]
SS, SE = opt("ss", 0), opt("se", 54)
pos = {}
tot = sum(gcost(f) for f in gA); accu = 0
for f in gA:
    pos.setdefault(GS + int((GE - GS) * accu / tot), []).append(f); accu += gcost(f)
lateB = []
for b in range(opt("bl", 7), 7): lateB += dmaB_ops(b)
for n, f in enumerate(lateB): pos.setdefault(n * opt("bsp", 1), []).append(f)
if lateB: SS = max(SS, len(lateB) * opt("bsp", 1))
for n, f in enumerate(sB): pos.setdefault(SS + (SE - SS) * n // len(sB), []).append(f)
def pubA():
    wait(vm=["hst0", "non"])
    publish(0)
    e(f"s_mov_b32 s{sT3}, 0")
    lab("L_nonc")
    e(f"v_min_u32 v{vOld}, v{vNonC}, v{vNonC+1}")
    e(f"v_cmp_ne_u32 vcc, 0, v{vOld}")
    e("s_cbranch_vccnz L_nonc_ok")
    e(f"s_lshl_b32 s{sT0}, s{sM2c}, 3")
    e(f"buffer_load_dwordx2 v[{vNonC}:{vNonC+1}], v{vZero}, {sr(SDBG,4)}, s{sT0} offen sc1")
    e("s_waitcnt vmcnt(0)")
    e(f"s_add_u32 s{sT3}, s{sT3}, 1")
    e(f"s_cmp_lt_u32 s{sT3}, 0x40000")
    e("s_cbranch_scc1 L_nonc")
    lab("L_nonc_ok")
    e(f"v_bfe_u32 v{vOld}, v{vLane}, 3, 1")
    e(f"v_cmp_eq_u32 vcc, 1, v{vOld}")
    e("s_nop 1")
    e(f"v_cndmask_b32 v{vNonS}, v{vNonC}, v{vNonC+1}, vcc")
m = 0
for i in range(7):
    for st in range(4):
        n2 = 4*i + st + 2
        rds = readB_ops(n2 // 4, n2 % 4) if n2 < 28 else []
        if n2 < 28 and n2 % 8 == 0:
            c = n2 // 4
            wait(vm=[f"B{c}", f"B{c+1}"] + (["B6"] if c == 4 else []))
            if c < 6: e("s_barrier")
        wait(lg=f"q{i}_{st}")
        for ti in range(2):
            mfma1(1, i, st, ti)
            for _ in range(2):
                if rds: rds.pop(0)()
            for f in pos.get(m, []): f()
            m += 1
stamp()
vPoll = 36
sH2 = 11
e(f"s_lshl_b32 s{sT0}, s{sM2c}, 1")
e(f"s_mul_i32 s{sT0}, s{sT0}, 112")
e(f"s_mul_i32 s{sT1}, s{sWave}, 28")
e(f"s_add_u32 s{sT0}, s{sT0}, s{sT1}")
e(f"s_lshl_b32 s{sH2}, s{sT0}, 10")
e(f"v_add_u32 v{vAW2c[0]}, 131072, v{vAW2[0]}")
e(f"v_add_u32 v{vAW2c[1]}, 131072, v{vAW2[1]}")
e("s_barrier")
dq2 += w2_dma_ops(3) + w2_dma_ops(4)
for _ in range(min(opt("nburst", 8), len(dq2))): dq2.pop(0)()
HB = 128
def h_ops(v):
    ops = []
    order = [(s, mi) for s in range(4) for mi in range(2)]
    if v == 6: order = [(s, 1) for s in range(4)] + [(s, 0) for s in range(4)]
    for n, (s, mi) in enumerate(order):
        def f(s=s, mi=mi, n=n):
            if n == 0:
                for hh in range(2):
                    hb(6 + hh, 2*v + hh)
                    e(f"s_lshl_b32 s{6+hh}, s{6+hh}, 11")
                    e(f"s_add_u32 s{6+hh}, s{6+hh}, s{sH2}")
            r = HB + 32*(v%4) + 8*s + 4*mi
            e(f"buffer_load_dwordx4 {vr(r,4)}, v{vG0 if mi==0 else vG1}, {sr(SWS,4)}, s{6 + s//2} offen offset:{(s%2)*1024} sc1"); VM.issue(f"h{v}_{s}" if v < 6 else f"h6_{s}_{mi}")
        ops.append(f)
    return ops
def mfma2(v, s, k):
    t, mi = k >> 1, k & 1
    r = HB + 32*(v%4) + 8*s + 4*mi
    c = "0" if (v == 0 and s == 0) else vr(acc(k),16)
    e(f"v_mfma_f32_32x32x16_bf16 {vr(acc(k),16)}, {ar(w2areg(v) + 8*s + 4*t, 4)}, {vr(r,4)}, {c}")
def pollload():
    if opt("p16", 1): e("s_mov_b64 exec, 0xffff")
    e(f"buffer_load_dword v{vPoll}, v{vFlagC}, {sr(SWS,4)}, 0 offen sc1")
    if opt("p16", 1): e("s_mov_b64 exec, -1")
def check(tag, name, masked):
    wait(vm=tag)
    e(f"s_mov_b32 s{sT3}, 0")
    lab(f"L_{name}")
    e(f"v_cmp_ne_u32 vcc, v{vPoll}, v{vNonS}")
    if masked:
        e("s_nop 0")
        e(f"s_and_b32 s{sT0}, vcc_lo, s{sAmask}")
        e(f"s_and_b32 s{sT0}, s{sT0}, 0xffff")
        e(f"s_cbranch_scc0 L_{name}_go")
    else:
        e("s_nop 0")
        e(f"s_and_b32 s{sT0}, vcc_lo, 0xffff")
        e(f"s_cbranch_scc0 L_{name}_go")
    pollload()
    e("s_waitcnt vmcnt(0)")
    e(f"s_add_u32 s{sT3}, s{sT3}, 1")
    e(f"s_cmp_lt_u32 s{sT3}, 0x40000")
    e(f"s_cbranch_scc1 L_{name}")
    lab(f"L_{name}_go")
gB = gelu_instrs(2, PK + 16) + gelu_instrs(3, PK + 24)
pos = {}
sG = [dq2.pop(0) for _ in range(min(opt("ng", 8), len(dq2)))]
for n, f in enumerate(sG): pos.setdefault(4 + (len(gB) - 8) * n // len(sG), []).append(f)
pos.setdefault(opt("pa", 100), []).append(pubA)
for n, f in enumerate(gB):
    f()
    for g in pos.get(n, []): g()
stamp()
post = list(dq2)
for u in (5, 6):
    post += [mk_wait_vm(u-5)] + w2_read_ops(u-5)
for u in (5, 6):
    post += [mk_wait_lg(u-5)] + w2_dma_ops(u)
PUBN = opt("pubn", 34)
for n, f in enumerate(post):
    f()
    if n == PUBN:
        wait(vm="hst1"); publish(1); stamp()
    if opt("dbg2", 0) and n in (PUBN - 1, PUBN + 8, PUBN + 17): stamp()
    if n == PUBN + opt("pdel", 0) and opt("epoll", 0):
        pollload(); VM.issue("poll1")
if not opt("epoll", 0):
    pollload(); VM.issue("poll1")
B2R = vT[8]
if opt("b2e", 1):
    for q in range(8): e(f"v_accvgpr_read_b32 v{B2R + q}, a{240 + q}")
else:
    e(f"v_lshrrev_b32 v{t0}, 5, v{vLane}")
    e(f"v_lshlrev_b32 v{t0}, 3, v{t0}")
    e(f"s_lshr_b32 s{sT0}, s{sWave}, 1")
    e(f"s_lshl_b32 s{sT0}, s{sT0}, 6")
    e(f"s_lshl_b32 s{sT1}, s{sFtl}, 7")
    e(f"s_add_u32 s{sT0}, s{sT0}, s{sT1}")
    B2R = vT[8]
    for q in range(4):
        e(f"buffer_load_dwordx2 {vr(B2R + 2*q, 2)}, v{t0}, {sr(SB2,4)}, s{sT0} offen offset:{16*q}"); VM.issue("b2")
wait(vm="w2_2")
for f in w2_read_ops(2): f()
if opt("dbg2", 0): stamp()
check("poll1", "pollA", True)
stamp()
if opt("p2pos", 0) == 0:
    pollload(); VM.issue("poll2")
hq = []
for v in range(7): hq += h_ops(v)
NH0 = opt("nh0", 10)
for _ in range(NH0): hq.pop(0)()
wait(vm="w2_3")
for f in w2_read_ops(3): f()
vRW, vRR = vT[0], [vT[1], vT[2], vT[3]]
e(f"v_add_u32 v{vRW}, s{sStage}, v{vH0}")
for k in (1, 2, 3):
    e(f"s_xor_b32 s{sT0}, s{sWave}, {k}")
    e(f"s_lshl_b32 s{sT0}, s{sT0}, 13")
    e(f"s_add_u32 s{sT0}, s{sT0}, {[0,0,4096,32768][k]}")
    e(f"v_add_u32 v{vRR[k-1]}, s{sT0}, v{vH0}")
RWOFF = {1: 0, 2: 4096, 3: 32768}
checked = [False]
for v in range(6):
    trs = w2_read_ops(v + 4) if v + 4 < 7 else []
    wait(lg=f"w2r{v}")
    for s in range(4):
        wait(vm=f"h{v}_{s}")
        for k in range(4):
            mfma2(v, s, k)
            issued = 56 - len(hq)
            target = min(56, 16 + 8*v + 2*s + (k+1)//2)
            if hq and issued < target + opt("ahead", 0) and issued // 8 - 4 < v:
                if issued == 24 and not checked[0]:
                    check("poll2", "pollB", False); checked[0] = True
                    stamp()
                if issued == opt("p2pos", 0):
                    pollload(); VM.issue("poll2")
                hq.pop(0)()
            if trs: trs.pop(0)()
assert not hq
stamp()
v = 6
wait(lg="w2r6")
def wr_ops(k):
    return [lambda q=q: e(f"ds_write_b128 v{vRW}, {vr(acc(k) + 4*q, 4)} offset:{RWOFF[k] + q*1024}") for q in range(4)]
BB = 224
fill = []
for q in range(4):
    for d in range(2):
        fill.append(f"v_lshlrev_b32 v{BB + 4*q + 2*d}, 16, v{B2R + 2*q + d}")
        fill.append(f"v_and_b32 v{BB + 4*q + 2*d + 1}, 0xffff0000, v{B2R + 2*q + d}")
vOA = vT[4]
fill += [f"v_and_b32 v{vOA}, 31, v{vLane}", f"v_lshrrev_b32 v{t5}, 5, v{vLane}", f"v_mul_u32_u24 v{vOA}, 896, v{vOA}", f"v_lshl_add_u32 v{vOA}, v{t5}, 4, v{vOA}"]
for s_ in range(4):
    wait(vm=f"h6_{s_}_1")
    mfma2(v, s_, 1); mfma2(v, s_, 3)
for sx in fill[:12]: e(sx)
w = wr_ops(1) + wr_ops(3)
for s_ in range(4):
    wait(vm=f"h6_{s_}_0")
    mfma2(v, s_, 2); w.pop(0)(); w.pop(0)()
for s_ in range(4):
    mfma2(v, s_, 0)
    for sx in fill[12+2*s_: 14+2*s_]: e(sx)
for f in wr_ops(2): f()
e(f"s_lshl_b32 s{sT0}, s{sM2c}, 1")
e(f"s_and_b32 s{sT1}, s{sWave}, 1")
e(f"s_add_u32 s{sT0}, s{sT0}, s{sT1}")
e(f"s_mul_i32 s{sT0}, s{sT0}, {32*896}")
e(f"s_lshl_b32 s{sT1}, s{sFtl}, 7")
e(f"s_add_u32 s{sT0}, s{sT0}, s{sT1}")
e(f"s_lshr_b32 s{sT1}, s{sWave}, 1")
e(f"s_lshl_b32 s{sT1}, s{sT1}, 6")
e(f"s_add_u32 s{sT0}, s{sT0}, s{sT1}")
e("s_waitcnt lgkmcnt(0)")
e("s_barrier")
RD = 128
for k in range(3):
    for q in range(4):
        e(f"ds_read_b128 {vr(RD + 16*k + 4*q, 4)}, v{vRR[k]} offset:{q*1024}")
OWN = acc(0)
for p in range(8): e(f"v_pk_add_f32 {vr(OWN+2*p,2)}, {vr(OWN+2*p,2)}, {vr(BB+2*p,2)}")
for k in range(3):
    e(f"s_waitcnt lgkmcnt({8 - 4*k})")
    for p in range(8): e(f"v_pk_add_f32 {vr(OWN+2*p,2)}, {vr(OWN+2*p,2)}, {vr(RD+16*k+2*p,2)}")
PO = 208
for p in range(8): e(f"v_cvt_pk_bf16_f32 v{PO+p}, v{OWN+2*p}, v{OWN+2*p+1}")
e("s_nop 1")
for qp in range(2):
    e(f"v_permlane32_swap_b32 v{PO+4*qp}, v{PO+4*qp+2}")
    e(f"v_permlane32_swap_b32 v{PO+4*qp+1}, v{PO+4*qp+3}")
for qp in range(2):
    e(f"buffer_store_dwordx4 {vr(PO+4*qp,4)}, v{vOA}, {sr(SOUT,4)}, s{sT0} offen offset:{32*qp}")
if STAMPS:
    stamp()
    e("s_waitcnt vmcnt(0)")
    stamp()
    e("s_memrealtime s[4:5]")
    e("s_waitcnt lgkmcnt(0)")
    e(f"s_lshl_b32 s6, s2, 2")
    e(f"s_add_u32 s6, s6, s{sWave}")
    e(f"s_lshl_b32 s6, s6, 6")
    e(f"s_add_u32 s6, s6, 0x8000000")
    e("v_mov_b32 v4, s100"); e("v_mov_b32 v5, s4")
    for k in range(14):
        if k < nstamp[0]:
            e(f"s_sub_u32 s7, s{74+2*k}, s98"); e(f"v_mov_b32 v{6+k}, s7")
        else: e(f"v_mov_b32 v{6+k}, 0")
    e("v_mov_b32 v20, s6")
    e(f"v_cmp_eq_u32 vcc, 0, v{vLane}")
    e("s_and_saveexec_b64 s[8:9], vcc")
    for k in range(4):
        e(f"buffer_store_dwordx4 v[{4+4*k}:{7+4*k}], v20, {sr(SWS,4)}, 0 offen offset:{16*k}")
lab("L_end")
e("s_endpgm")
lab("L_spare")
if PF:
    nstamp[0] = 0
    e(f"s_cmp_ge_u32 s2, {GRID}")
    e("s_cbranch_scc1 L_end2")
    e("s_load_dwordx2 s[4:5], s[0:1], 24")
    e("s_load_dwordx2 s[6:7], s[0:1], 8")
    e("s_load_dwordx2 s[32:33], s[0:1], 56")
    e("v_and_b32 v1, 63, v0")
    e("v_lshrrev_b32 v2, 6, v0")
    e("s_and_b32 s8, s2, 7")
    e("v_readfirstlane_b32 s9, v2")
    e(f"s_sub_u32 s14, s2, {NWG}")
    e("s_lshr_b32 s10, s14, 3")
    e("s_mul_i32 s10, s10, 401408")
    e("s_mul_i32 s11, s8, 50176")
    e("s_lshl_b32 s12, s9, 13")
    e("s_add_u32 s11, s11, s12")
    e("v_lshlrev_b32 v3, 7, v1")
    e("s_mov_b32 s22, 1605632")
    e("s_mov_b32 s23, 0x20000")
    e("s_mov_b32 s26, 1605632")
    e("s_mov_b32 s27, 0x20000")
    e("s_mov_b32 s34, 0x10000000")
    e("s_mov_b32 s35, 0x20000")
    e("s_lshl_b32 s13, s14, 2")
    e("s_add_u32 s13, s13, s9")
    e("s_mul_i32 s13, s13, 12544")
    e("v_min_u32 v6, 48, v1")
    e("v_lshlrev_b32 v6, 8, v6")
    e("s_waitcnt lgkmcnt(0)")
    e("s_mov_b32 s20, s4"); e("s_mov_b32 s21, s5")
    e("s_mov_b32 s24, s6"); e("s_mov_b32 s25, s7")
    if opt("pfw1", 1):
        e("buffer_load_dword v7, v6, s[24:27], s13 offen offset:128")
    if opt("pfwait", 0): e("s_waitcnt vmcnt(0)")
    if opt("pford", 1):
        for n in range(opt("pfpre", 2)):
            e("v_add_u32 v4, s11, v3")
            e("v_subrev_u32 v5, 401408, v4")
            e("v_min_u32 v4, v4, v5")
            e(f"buffer_load_dword v{24+n}, v4, s[20:23], s10 offen")
            e("s_add_u32 s11, s11, 32768")
            e("s_sub_u32 s12, s11, 401408")
            e("s_min_u32 s11, s11, s12")
        e("s_lshr_b32 s40, s14, 3")
        e("s_and_b32 s40, s40, 1")
        e("s_mul_i32 s41, s40, 7")
        e("s_sub_u32 s42, 28, s41")
        e("s_add_u32 s43, s41, 21")
        e("s_mul_i32 s44, s8, s42"); e("s_lshr_b32 s44, s44, 3")
        e("s_mul_i32 s45, s8, s43"); e("s_lshr_b32 s45, s45, 3")
        e("s_xor_b32 s46, s40, 1")
        for n in range(13):
            e(f"s_add_u32 s47, s9, {4*n}")
            e("s_min_u32 s47, s47, 48")
            e("s_sub_u32 s48, s47, s42")
            e("s_cmp_lt_u32 s47, s42")
            e("s_cselect_b32 s47, s47, s48")
            e("s_cselect_b32 s49, s44, s45")
            e("s_cselect_b32 s50, s42, s43")
            e("s_cselect_b32 s51, s40, s46")
            e("s_add_u32 s47, s47, s49")
            e("s_sub_u32 s48, s47, s50")
            e("s_cmp_ge_u32 s47, s50")
            e("s_cselect_b32 s47, s48, s47")
            e("s_mul_i32 s48, s47, 37"); e("s_lshr_b32 s48, s48, 8")
            e("s_add_u32 s49, s48, s51")
            e("s_mul_i32 s49, s49, 7")
            e("s_add_u32 s47, s47, s49")
            e("s_lshl_b32 s47, s47, 13")
            e("s_add_u32 s47, s47, s10")
            e(f"buffer_load_dword v{8+n}, v3, s[20:23], s47 offen")
    else:
      for n in range(13):
        e("v_add_u32 v4, s11, v3")
        e("v_subrev_u32 v5, 401408, v4")
        e("v_min_u32 v4, v4, v5")
        e(f"buffer_load_dword v{8+n}, v4, s[20:23], s10 offen")
        e("s_add_u32 s11, s11, 32768")
        e("s_sub_u32 s12, s11, 401408")
        e("s_min_u32 s11, s11, s12")
    if STAMPS:
        for n in (11, 6, 3, 0):
            e(f"s_waitcnt vmcnt({n})"); stamp()
        e("s_memrealtime s[4:5]")
        e("s_waitcnt lgkmcnt(0)")
        e(f"s_lshl_b32 s6, s2, 2")
        e(f"s_add_u32 s6, s6, s9")
        e(f"s_lshl_b32 s6, s6, 6")
        e(f"s_add_u32 s6, s6, 0x8000000")
        e("v_mov_b32 v4, s100"); e("v_mov_b32 v5, s4")
        for k in range(6):
            if k < nstamp[0]:
                e(f"s_sub_u32 s7, s{74+2*k}, s98"); e(f"v_mov_b32 v{6+k}, s7")
        e("v_mov_b32 v20, s6")
        e(f"v_cmp_eq_u32 vcc, 0, v1")
        e("s_and_saveexec_b64 s[8:9], vcc")
        for k in range(2):
            e(f"buffer_store_dwordx4 v[{4+4*k}:{7+4*k}], v20, s[32:35], 0 offen offset:{16*k}")
    e("s_waitcnt vmcnt(0)")
    lab("L_end2")
e("s_endpgm")
kd = f""".section .rodata,"a"
.p2align 6
.amdhsa_kernel {NAME}
  .amdhsa_next_free_vgpr 512
  .amdhsa_next_free_sgpr 102
  .amdhsa_accum_offset 256
  .amdhsa_group_segment_fixed_size 0
  .amdhsa_kernarg_size 64
  .amdhsa_user_sgpr_count 2
  .amdhsa_user_sgpr_kernarg_segment_ptr 1
  .amdhsa_system_sgpr_workgroup_id_x 1
.end_amdhsa_kernel
"""
open(OUT, "w").write(top + "\n".join(L) + "\n" + kd)
```
